```python
import torch

def _softmax(x, axis=-1):
    return torch.softmax(x, dim=axis)

def _gelu(x):
    return torch.nn.functional.gelu(x, approximate='tanh')

def _silu(x):
    return torch.nn.functional.silu(x)

def _sigmoid(x):
    return torch.sigmoid(x)

def _layernorm(x, axis=-1, eps=1e-05):
    m = x.mean(dim=axis, keepdim=True)
    v = x.var(dim=axis, keepdim=True, unbiased=False)
    return (x - m) / torch.sqrt(v + eps)

def _scatter_add(tgt, idx, src, axis=0):
    return tgt.clone().index_add_(axis, idx, src)

def _segment_sum(src, seg, n):
    out = torch.zeros((n,) + src.shape[1:], dtype=src.dtype)
    return out.index_add_(0, seg, src)

def _pad(x, pw):
    flat = tuple((v for pair in reversed(pw) for v in pair))
    return torch.nn.functional.pad(x, flat)
kernel_name = 'adaLN_cond__memory_aug_recurrent_mem_tr__mixer_s_mlp__prompt'

def setup_inputs():

    _w = lambda a: (lambda t: t.to(torch.bfloat16) if t.is_floating_point() else t)(torch.as_tensor(a))

    def _A_setup():
        B, S, Dm = (1, 2048, 640)
        H, Dh = (32, 128)
        M, seg = (8, 32)
        seg = min(seg, S)
        S = S // seg * seg
        return {'x': _w((lambda *s: torch.randn(*s, dtype=torch.bfloat16) * 0.05)(B, S, Dm)), 'mem0': _w((lambda *s: torch.randn(*s, dtype=torch.bfloat16) * 0.4)(B, M, Dm)), 'Wq': _w((lambda *s: torch.randn(*s, dtype=torch.bfloat16) * 3.2)(Dm, H, Dh) * Dm ** (-0.5)), 'Wk': _w((lambda *s: torch.randn(*s, dtype=torch.bfloat16) * 3.2)(Dm, H, Dh) * Dm ** (-0.5)), 'Wv': _w((lambda *s: torch.randn(*s, dtype=torch.bfloat16) * 0.4)(Dm, H, Dh) * Dm ** (-0.5)), 'Wo': _w((lambda *s: torch.randn(*s, dtype=torch.bfloat16) * 0.4)(H, Dh, Dm) * (H * Dh) ** (-0.5)), 'seg_len': seg}
    _A_in = _A_setup()

    def _B_setup():
        B, S, D, F = (1, 2048, 640, 1728)
        return {'x': _w((lambda *s: torch.randn(*s, dtype=torch.bfloat16) * 0.05)(B, S, D)), 'w1': _w((lambda *s: torch.randn(*s, dtype=torch.bfloat16) * 3.2)(D, D) * D ** (-0.5)), 'w2': _w((lambda *s: torch.randn(*s, dtype=torch.bfloat16) * 3.2)(D, D) * D ** (-0.5)), 'w3': _w((lambda *s: torch.randn(*s, dtype=torch.bfloat16) * 3.2)(D, F) * D ** (-0.5)), 'w4': _w((lambda *s: torch.randn(*s, dtype=torch.bfloat16) * 3.2)(F, D) * F ** (-0.5))}
    _B_in = _B_setup()
    return {'A_x': _A_in['x'], 'A_mem0': _A_in['mem0'], 'A_Wq': _A_in['Wq'], 'A_Wk': _A_in['Wk'], 'A_Wv': _A_in['Wv'], 'A_Wo': _A_in['Wo'], 'A_seg_len': _A_in['seg_len'], 'B_x': _B_in['x'], 'B_w1': _B_in['w1'], 'B_w2': _B_in['w2'], 'B_w3': _B_in['w3'], 'B_w4': _B_in['w4'], 'c': _w((lambda *s: torch.randn(*s, dtype=torch.bfloat16) * 0.1)(1, 640) * 8.0), 'w_mod': _w((lambda *s: torch.randn(*s, dtype=torch.bfloat16) * 0.1)(640, 6 * 640) * 640 ** (-0.5) * 8.0)}

def reference(A_x, A_mem0, A_Wq, A_Wk, A_Wv, A_Wo, A_seg_len, B_x, B_w1, B_w2, B_w3, B_w4, c, w_mod):

    def _A_ref(x, mem0, Wq, Wk, Wv, Wo, seg_len):
        B, S, Dm = x.shape
        H, Dh = (Wq.shape[1], Wq.shape[2])
        M = mem0.shape[1]
        scale = Dh ** (-0.5)
        n_seg = S // seg_len
        L = M + seg_len
        idx = torch.arange(L)
        mask = (idx[:, None] < M) | (idx[:, None] >= idx[None, :])
        mem = mem0
        outs = []
        for s in range(n_seg):
            xs = x[:, s * seg_len:(s + 1) * seg_len, :].clone()
            h = torch.concatenate([mem, xs], axis=1)
            q = torch.einsum('btd,dhe->bhte', h, Wq)
            k = torch.einsum('btd,dhe->bhte', h, Wk)
            v = torch.einsum('btd,dhe->bhte', h, Wv)
            scores = torch.einsum('bhqe,bhke->bhqk', q, k) * scale
            scores = torch.where(mask[None, None], scores, -1000000000.0)
            p = _softmax(scores, axis=-1)
            o = torch.einsum('bhqk,bhke->bhqe', p, v)
            o = torch.einsum('bhte,hed->btd', o, Wo)
            mem = o[:, :M, :].clone()
            outs.append(o[:, M:, :])
        return torch.concatenate(outs, axis=1)

    def _B_ref(x, w1, w2, w3, w4):
        B, S, D = x.shape
        h = _gelu(_layernorm(x, axis=-1) @ w1)
        c = D // 4
        g0 = _pad(h[:, :, 0 * c:1 * c], ((0, 0), (1, 0), (0, 0)))[:, :S, :]
        g1 = _pad(h[:, :, 1 * c:2 * c], ((0, 0), (0, 1), (0, 0)))[:, 1:, :]
        g2 = _pad(h[:, :, 2 * c:3 * c], ((0, 0), (2, 0), (0, 0)))[:, :S, :]
        g3 = _pad(h[:, :, 3 * c:], ((0, 0), (0, 2), (0, 0)))[:, 2:, :]
        hs = torch.concatenate([g0, g1, g2, g3], axis=-1) @ w2
        x1 = x + hs
        h2 = _gelu(_layernorm(x1, axis=-1) @ w3) @ w4
        return x1 + h2
    x = A_x
    mod = (_silu(c) @ w_mod).reshape(c.shape[0], 6, 1, -1)
    sa, ca, ga, sb, cb, gb = (mod[:, 0].clone(), mod[:, 1].clone(), mod[:, 2].clone(), mod[:, 3].clone(), mod[:, 4].clone(), mod[:, 5].clone())
    h = _layernorm(x, axis=-1) * (1 + ca) + sa
    x = x + ga * _A_ref(h, A_mem0, A_Wq, A_Wk, A_Wv, A_Wo, A_seg_len)
    h = _layernorm(x, axis=-1) * (1 + cb) + sb
    x = x + gb * _B_ref(h, B_w1, B_w2, B_w3, B_w4)
    return x
```

```python
import re

TRANS = ("v_exp_f32", "v_log_f32", "v_rcp_f32", "v_rsq_f32", "v_sqrt_f32", "v_sin_f32", "v_cos_f32")
RMW = ("v_fmac_", "v_pk_fmac", "v_dot2c", "v_mac_")
REG_RE = re.compile(r"^(-|\|)?(abs\()?([vas])(\d+|\[(\d+):(\d+)\])\)?\|?$")


def v(i, n=1):
    return f"v{i}" if n == 1 else f"v[{i}:{i + n - 1}]"


def a(i, n=1):
    return f"a{i}" if n == 1 else f"a[{i}:{i + n - 1}]"


def s(i, n=1):
    return f"s{i}" if n == 1 else f"s[{i}:{i + n - 1}]"


def regs_of(tok):
    tok = tok.strip()
    if tok == "vcc":
        return {("s", "vcc")}
    if tok == "exec":
        return {("s", "exec")}
    if tok == "m0":
        return {("s", "m0")}
    m = REG_RE.match(tok)
    if not m:
        return set()
    kind = m.group(3)
    if m.group(5) is not None:
        return {(kind, i) for i in range(int(m.group(5)), int(m.group(6)) + 1)}
    return {(kind, int(m.group(4)))}


class Ins:
    __slots__ = ("text", "op", "cls", "wr", "rd", "passes", "srcA", "srcB", "srcC", "label", "target",
                 "states", "dpp", "wide_store", "lds_dma", "uncond")

    def __init__(self, text):
        self.text = text
        self.label = None
        self.target = None
        self.cls = "none"
        self.wr = set()
        self.rd = set()
        self.passes = 0
        self.srcA = self.srcB = self.srcC = set()
        self.states = 0
        self.dpp = False
        self.wide_store = set()
        self.lds_dma = False
        self.uncond = False
        self.op = ""
        body = text.split(";")[0].strip()
        if not body or body.startswith("."):
            if body.endswith(":"):
                self.label = body[:-1]
            return
        if body.endswith(":"):
            self.label = body[:-1]
            return
        parts = body.split(None, 1)
        op = self.op = parts[0]
        rest = parts[1] if len(parts) > 1 else ""
        ops = [x.strip() for x in rest.split(",")] if rest else []
        mods = ""
        if ops:
            last = ops[-1].split(None, 1)
            ops[-1] = last[0]
            mods = last[1] if len(last) > 1 else ""
        R = [regs_of(x) for x in ops]
        self.states = 1
        if op == "s_nop":
            self.cls = "salu"
            self.states = int(ops[0], 0) + 1
        elif op.startswith("v_mfma") or op.startswith("v_smfmac"):
            self.cls = "mfma"
            self.passes = 8 if "32x32" in op else 4
            self.wr = R[0]
            self.srcA, self.srcB = R[1], R[2]
            if op.startswith("v_smfmac"):
                self.srcC = R[0]
                self.srcB = self.srcB | R[3]
            else:
                self.srcC = R[3]
            self.rd = self.srcA | self.srcB | self.srcC
        elif op.startswith("v_"):
            self.cls = "trans" if op.startswith(TRANS) else "valu"
            self.dpp = "dpp" in op or "row_" in mods or "quad_perm" in mods
            if op.startswith("v_permlane"):
                self.wr = R[0] | R[1]
                self.rd = R[0] | R[1]
            elif op.startswith("v_cmp"):
                self.wr = set(R[0])
                self.rd = set().union(*R[1:])
            elif op.startswith(("v_add_co", "v_sub_co", "v_addc_co", "v_subb_co", "v_subrev_co", "v_div_scale",
                                "v_mad_u64_u32")):
                self.wr = R[0] | R[1]
                self.rd = set().union(*R[2:])
            elif op == "v_nop":
                pass
            else:
                self.wr = set(R[0])
                self.rd = set().union(*R[1:]) if len(R) > 1 else set()
                if op.startswith(RMW) or op.startswith("v_writelane") or self.dpp:
                    self.rd |= R[0]
                if op.startswith("v_div_fmas"):
                    self.rd |= {("s", "vcc")}
        elif op.startswith(("buffer_", "global_")):
            self.cls = "vmem"
            allr = set().union(*R) if R else set()
            is_lds = " lds" in (" " + mods) or "_lds_" in op
            if op.startswith(("buffer_inv", "buffer_wbl2")):
                pass
            elif "_load" in op and not is_lds:
                self.wr = set(R[0])
                self.rd = set().union(*R[1:])
            elif "_atomic" in op and "sc0" in mods:
                self.wr = set(R[0])
                self.rd = allr
            else:
                self.rd = allr
                if "_store" in op and ("x4" in op or "x3" in op):
                    self.wide_store = set(R[0] if op.startswith("buffer_") else R[1])
            if is_lds:
                self.lds_dma = True
                self.rd = self.rd | {("s", "m0")}
        elif op.startswith("ds_"):
            self.cls = "ds"
            if op.startswith(("ds_read", "ds_bpermute", "ds_permute", "ds_swizzle")) or "_rtn" in op:
                self.wr = set(R[0])
                self.rd = set().union(*R[1:])
            else:
                self.rd = set().union(*R)
        elif op.startswith("s_"):
            self.cls = "salu"
            if op in ("s_branch",) or op.startswith("s_cbranch"):
                self.target = ops[0]
                self.uncond = op == "s_branch"
            elif op == "s_endpgm":
                self.uncond = True
            elif op.startswith(("s_cmp", "s_waitcnt", "s_barrier", "s_sleep", "s_setprio", "s_bitcmp")):
                self.rd = set().union(*R) if R else set()
            else:
                self.wr = set(R[0]) if R else set()
                self.rd = set().union(*R[1:]) if len(R) > 1 else set()
                if "saveexec" in op:
                    self.wr |= {("s", "exec")}
        else:
            raise ValueError("unknown instruction: " + text)


def vec(rs):
    return {r for r in rs if r[0] in "va"}


def sca(rs):
    return {r for r in rs if r[0] == "s"}


def need(p, c):
    n = 0
    pv = p.cls in ("valu", "trans")
    cv = c.cls in ("valu", "trans")
    if pv:
        w = vec(p.wr)
        ws = sca(p.wr)
        if c.cls == "mfma" and w & c.rd:
            n = max(n, 2)
        if cv and c.op.startswith("v_permlane") and w & c.rd:
            n = max(n, 2)
        if cv and c.dpp and w & c.rd:
            n = max(n, 2)
        if cv and c.op.startswith(("v_readlane", "v_readfirstlane")) and w & c.rd:
            n = max(n, 1)
        if p.cls == "trans" and c.cls == "valu" and w & (c.rd | c.wr):
            n = max(n, 1)
        if p.cls == "trans" and c.cls in ("vmem", "ds") and w & c.rd:
            n = max(n, 1)
        if ws:
            if c.cls == "vmem" and ws & c.rd:
                n = max(n, 5)
            if cv and ws & c.rd:
                n = max(n, 4 if c.op.startswith(("v_readlane", "v_writelane", "v_div_fmas")) else 2)
            if c.cls == "salu" and ws & c.rd:
                n = max(n, 1)
        if ("op_sel" in p.text and not p.op.startswith("v_pk_")) or "sdwa" in p.op:
            if cv and w & (c.rd | c.wr):
                n = max(n, 1)
    if p.cls == "mfma":
        d = p.wr
        big = p.passes == 8
        if c.cls == "mfma":
            if d & (c.srcA | c.srcB):
                n = max(n, 12 if big else 8)
            if d & c.srcC and not (d == c.srcC and p.op == c.op):
                n = max(n, 10 if big else 6)
            if d & c.wr and not (d & c.srcC):
                n = max(n, 10 if big else 6)
        elif cv or c.cls in ("vmem", "ds"):
            if d & (c.rd | c.wr):
                n = max(n, 12 if big else 8)
        if cv and p.srcC & c.wr:
            n = max(n, 7 if big else 3)
    if p.wide_store:
        if cv and p.wide_store & c.wr:
            n = max(n, 2)
        elif p.wide_store & c.wr:
            n = max(n, 1)
    if p.cls == "salu" and ("s", "m0") in p.wr and c.lds_dma:
        n = max(n, 1)
    return n


MAXW = 12


def fix_hazards(lines):
    ins = [Ins(t) for t in lines]
    total = 0
    while True:
        labels = {x.label: i for i, x in enumerate(ins) if x.label}
        jumps = {}
        for i, x in enumerate(ins):
            if x.target is not None:
                jumps.setdefault(labels[x.target], []).append(i)
        out = []
        added = 0
        for i, c in enumerate(ins):
            if c.states and c.cls != "none" and c.op != "s_nop":
                short = 0
                stack = [(i, 0)]
                seen = {}
                while stack:
                    j, dist = stack.pop()
                    preds = []
                    if j > 0 and not ins[j - 1].uncond:
                        preds.append(j - 1)
                    preds += jumps.get(j, [])
                    for k in preds:
                        p = ins[k]
                        if seen.get(k, 99) <= dist:
                            continue
                        seen[k] = dist
                        if p.states:
                            short = max(short, need(p, c) - dist)
                        nd = dist + p.states
                        if nd < MAXW:
                            stack.append((k, nd))
                if short > 0:
                    out.append(Ins(f"    s_nop {short - 1}"))
                    added += 1
                    out.append(c)
                    out.extend(ins[i + 1:])
                    break
            out.append(c)
        ins = out
        total += added
        if not added:
            break
    return [x.text for x in ins], total


def fix_hazards_fast(lines):
    ins = [Ins(t) for t in lines]
    total = 0
    while True:
        labels = {}
        for i, x in enumerate(ins):
            if x.label:
                labels[x.label] = i
        jumps = {}
        for i, x in enumerate(ins):
            if x.target is not None:
                jumps.setdefault(labels[x.target], []).append(i)
        extra = [0] * len(ins)
        added = 0
        for i, c in enumerate(ins):
            if not (c.states and c.cls != "none" and c.op != "s_nop"):
                continue
            short = 0
            stack = [(i, 0)]
            seen = {}
            while stack:
                j, dist = stack.pop()
                preds = []
                if j > 0 and not ins[j - 1].uncond:
                    preds.append(j - 1)
                preds += jumps.get(j, [])
                for k in preds:
                    p = ins[k]
                    if seen.get(k, 99) <= dist:
                        continue
                    seen[k] = dist
                    if p.states:
                        short = max(short, need(p, c) - dist)
                    nd = dist + p.states + extra[k]
                    if nd < MAXW:
                        stack.append((k, nd))
            if short > 0:
                extra[i] = short
                added += 1
        if not added:
            break
        out = []
        for i, c in enumerate(ins):
            if extra[i]:
                out.append(Ins(f"    s_nop {extra[i] - 1}"))
            out.append(c)
        ins = out
        total += added
    return [x.text for x in ins], total


class Asm:
    def __init__(self):
        self.lines = []
        self.uid = 0

    def __call__(self, text):
        for t in text.split("\n"):
            t = t.strip()
            if not t:
                continue
            self.lines.append(t if t.endswith(":") else "    " + t)

    def label(self, name):
        self.lines.append(name + ":")

    def newlabel(self, stem):
        self.uid += 1
        return f"L_{stem}_{self.uid}"

    def c(self, text):
        self.lines.append("    ; " + text)


def kernel_text(name, asm):
    body, n = fix_hazards_fast(asm.lines)
    head = [f".globl {name}", ".p2align 8", f".type {name},@function", f"{name}:"]
    return "\n".join(head + body) + "\n", n


def descriptor(name, vgpr, accum, sgpr=102):
    return (f".amdhsa_kernel {name}\n"
            f"  .amdhsa_next_free_vgpr {vgpr}\n"
            f"  .amdhsa_next_free_sgpr {sgpr}\n"
            f"  .amdhsa_accum_offset {accum}\n"
            "  .amdhsa_group_segment_fixed_size 0\n"
            "  .amdhsa_kernarg_size 136\n"
            "  .amdhsa_user_sgpr_count 2\n"
            "  .amdhsa_user_sgpr_kernarg_segment_ptr 1\n"
            "  .amdhsa_system_sgpr_workgroup_id_x 1\n"
            "  .amdhsa_float_denorm_mode_32 3\n"
            ".end_amdhsa_kernel\n")


def build_file(header_comments, launches, kernels):
    out = list(header_comments)
    for name, grid, block, lds in launches:
        out.append(f"; @launch kernel={name} grid=({grid},1,1) block=({block},1,1) lds={lds}")
    out.append('.amdgcn_target "amdgcn-amd-amdhsa--gfx950"')
    out.append(".text")
    nops = 0
    for name, asm, _, _ in kernels:
        t, n = kernel_text(name, asm)
        nops += n
        out.append(t)
    out.append('.section .rodata,"a"')
    for name, _, vg, ac in kernels:
        out.append(".p2align 6")
        out.append(descriptor(name, vg, ac))
    return "\n".join(out), nops
```

```python
WS_BYTES = 268435456
FLAGS = 0x0
PAR = 0x100
STAMP = 0x8000
MOD = 0x20000
PL = 0x100000
PL_G = 163840
EXM = 0x400000
EXV = 0x600000
EX2 = 0x7400000 - 0x400000
D_RINIT = 0
H = 0x800000
KM = 0xC00000
VM = 0x1000000
QT = 0x1400000
KT = 0x2400000
VT = 0x3400000
O = 0x4400000
X2 = 0x5400000
H2 = 0x5800000
T3 = 0x5C00000
U1 = 0x6000000
X1 = 0x6400000
T4 = 0x6800000
U2 = 0x6C00000
PO = 0x7C00000
END = 0x9000000

K_X, K_MEM0, K_WQ, K_WK, K_WV, K_WO, K_SEG, K_BX, K_W1, K_W2, K_W3, K_W4, K_C, K_WMOD, K_OUT, K_DBG, K_WS = (8 * i for i in range(17))
```

```python
from asmlib import Asm, v, a, s
import layout as L

MEM = 0
KTL = MEM + 10240
QX = KTL + 8192
KX = QX + 2048
OX = KX + 4096
ORS = 272
WST = 32768
LDS_BYTES = 163840
LAST = 63
PH = None
DUMPS = None
sPh = 92

SW = 4
ST = 8
SW2 = 68
P_MEM0, P_WQ, P_WK, P_WV, P_WO, P_DBG, P_WS = 12, 14, 16, 18, 20, 22, 24
sX, sH, sWv, sStep, sTag, sSpin = 26, 27, 28, 29, 30, 31
sML, sMRw, sMRr, sKT0, sTagV, sVTo, sVTp, sKM, sVM = 32, 33, 34, 35, 36, 37, 38, 39, 40
sPL, sVXw, sVXr, sOwn, sMLb = 41, 42, 43, 44, 45
sVXbw, sVXbr, sMLp, sKT1, sW1k = 64, 65, 66, 67, 72
sT0, sT1, sT2, sT3, sCs, sPar = 46, 47, 48, 49, 50, 51
sFast = 52
D1, D2, VXP, NOWAIT, PIPE, H1P, EDMA, B5, H2P, R2, V2 = 3, 14, 1, 0, 5, 2, 1, 0, 6, 0, 1
sTime = 54
sEx = 60

vIdx = 1
vOnes = 2
vSel = 6
vPm = 10
vVo = 12
vVp = 14
aLin, aWst, aR1, aR2, aW1, aW4, aW2, aQW, aKW, aQR, aKR, aOW, aOR, aP4, aP1, aR3, aR4, aVP = range(16, 34)
T2a, T2b, vV2 = 0, 34, 35
vVt = 36
X = 44
Y = 84
Z = 116
U = 132
T = 156
WV0 = 160


def wreg(i):
    return a(8 * i, 8) if i < 32 else v(WV0 + 8 * (i - 32), 8)


def wreg_part(i, off, n):
    return a(8 * i + off, n) if i < 32 else v(WV0 + 8 * (i - 32) + off, n)


LDSF = [("q", 0, 0), ("q", 1, 0), ("q", 0, 1), ("q", 1, 1), ("q", 0, 2), ("q", 1, 2),
        ("q", 0, 3), ("q", 1, 3), ("q", 0, 4), ("q", 1, 4), ("k", 0, 0), ("k", 0, 2),
        ("q", 1, 5), ("q", 1, 6), ("q", 1, 7), ("q", 1, 8)]
BUF = [Y, Y + 8, Y + 16, Y + 24, Z, Z + 8]
ALLF = ([("q", t, f) for t in range(2) for f in range(10)] + [("k", t, f) for t in range(2) for f in range(10)]
        + [("v", 0, f) for f in range(10)] + [("o", t, kf) for t in range(5) for kf in range(2)])
RES = {x: i for i, x in enumerate(y for y in ALLF if y not in LDSF)}
assert len(RES) == 44


def buf_of(x):
    return BUF[LDSF.index(x) % 6]


def operand(x):
    return wreg(RES[x]) if x in RES else v(buf_of(x), 8)


OPACC = [X + 20 + 4 * i for i in range(5)]
OPQ = X
HQ = 16


def fill_dst(x, off):
    return wreg_part(RES[x], off, 2) if x in RES else v(HQ + 8 * LDSF.index(x) + off, 2)


def srd(A, base, ptr, nbytes):
    A(f"s_mov_b32 {s(base)}, {s(ptr)}")
    A(f"s_and_b32 {s(base + 1)}, {s(ptr + 1)}, 0xffff")
    A(f"s_mov_b32 {s(base + 2)}, {nbytes}")
    A(f"s_mov_b32 {s(base + 3)}, 0x20000")


def retry(A, top, spin=None):
    spin = sSpin if spin is None else spin
    ok = A.newlabel("ok")
    A(f"s_cbranch_vccz {ok}")
    A(f"s_sub_u32 {s(spin)}, {s(spin)}, 1")
    A(f"s_cbranch_scc0 {top}")
    A(f"s_mov_b32 {s(spin)}, 0")
    A.label(ok)


def masked_retry(A, top):
    ok = A.newlabel("ok")
    A(f"s_cbranch_vccz {ok}")
    A("s_mov_b64 exec, vcc")
    A(f"s_sub_u32 {s(sSpin)}, {s(sSpin)}, 1")
    A(f"s_cbranch_scc0 {top}")
    A(f"s_mov_b32 {s(sSpin)}, 0")
    A("s_mov_b64 exec, -1")
    A.label(ok)


def lane_fields(A, vn, vg):
    A(f"v_and_b32 {v(vn)}, 15, v0")
    A(f"v_bfe_u32 {v(vg)}, v0, 4, 2")


PHSEL = None


def phase(A, name):
    if PH is None or (PHSEL and name not in PHSEL):
        return
    if name not in PH:
        PH.append(name)
    A(f"s_memtime {s(74 + 2 * PH.index(name), 2)}")


TRACE = 0


def phase_fold(A):
    if PH is None:
        return
    A("s_waitcnt lgkmcnt(0)")
    if TRACE:
        A(f"s_lshl_b32 s62, {s(sX)}, 5")
        A(f"s_add_u32 s62, s62, {s(sH)}")
        A(f"s_lshl_b32 s62, s62, 2")
        A(f"s_add_u32 s62, s62, {s(sWv)}")
        A(f"s_lshl_b32 s62, s62, 6")
        A(f"s_add_u32 s62, s62, {s(sStep)}")
        A(f"s_lshl_b32 s62, s62, 5")
        A(f"s_add_u32 s62, s62, {L.X2}")
        for i in range(8):
            A(f"v_mov_b32 {v(X + 32 + i)}, {s(74 + 2 * i)}")
        A(f"v_mov_b32 {v(T2b)}, 0")
        A("s_mov_b64 exec, 1")
        A(f"buffer_store_dwordx4 {v(X + 32, 4)}, {v(T2b)}, {s(SW, 4)}, s62 offen")
        A(f"buffer_store_dwordx4 {v(X + 36, 4)}, {v(T2b)}, {s(SW, 4)}, s62 offen offset:16")
        A("s_mov_b64 exec, -1")
        A("s_waitcnt vmcnt(0)" if TRACE == 2 else "s_nop 0")
        return
    for i in range(len(PHSEL)):
        A(f"s_sub_u32 s62, {s(74 + 2 * i)}, s73")
        A(f"s_add_u32 {s(92 + i)}, {s(92 + i)}, s62")
    A(f"s_mov_b32 s73, {s(74 + 2 * (len(PHSEL) - 1))}")


CNT = False


def count(A, i):
    if CNT:
        A(f"s_add_u32 {s(98 + i)}, {s(98 + i)}, 1")


def dump(A, name, reg):
    if DUMPS is None:
        return
    i = len(DUMPS)
    DUMPS.append(name)
    skip = A.newlabel("dump")
    A(f"s_cmp_lg_u32 {s(sStep)}, 0")
    A(f"s_cbranch_scc1 {skip}")
    A(f"s_lshl_b32 s62, {s(sX)}, 5")
    A(f"s_add_u32 s62, s62, {s(sH)}")
    A(f"s_lshl_b32 s62, s62, 12")
    A(f"s_add_u32 s62, s62, {L.X2 + i * 262144}")
    A("s_waitcnt lgkmcnt(0)")
    A("s_nop 7")
    A(f"buffer_store_dwordx4 {v(reg, 4)}, {v(aW1)}, {s(SW, 4)}, s62 offen")
    A("s_waitcnt vmcnt(0)")
    A.label(skip)


def partial_addrs(A, n, g, t0, t1, d4, d1):
    A(f"s_lshl_b32 {s(sT0)}, {s(sWv)}, 15")
    A(f"s_lshl_b32 {s(sT1)}, {s(sH)}, 7")
    A(f"s_add_u32 {s(sT0)}, {s(sT0)}, {s(sT1)}")
    A(f"v_and_b32 {v(t1)}, 1, {v(n)}")
    A(f"v_lshl_add_u32 {v(t1)}, {v(g)}, 1, {v(t1)}")
    A(f"v_lshlrev_b32 {v(t1)}, 4, {v(t1)}")
    A(f"v_lshrrev_b32 {v(t0)}, 1, {v(n)}")
    A(f"v_lshl_add_u32 {v(d4)}, {v(t0)}, 12, {v(t1)}")
    A(f"v_add_u32 {v(d4)}, {s(sT0)}, {v(d4)}")
    A(f"s_lshl_b32 {s(sT0)}, {s(sWv)}, 13")
    A(f"s_add_u32 {s(sT0)}, {s(sT0)}, {s(sT1)}")
    A(f"s_add_u32 {s(sT0)}, {s(sT0)}, {32 * 4096}")
    A(f"v_and_b32 {v(t0)}, 3, {v(t0)}")
    A(f"v_lshl_add_u32 {v(d1)}, {v(t0)}, 2, {v(t1)}")
    A(f"v_lshrrev_b32 {v(t0)}, 3, {v(n)}")
    A(f"v_lshl_add_u32 {v(d1)}, {v(t0)}, 12, {v(d1)}")
    A(f"v_add_u32 {v(d1)}, {s(sT0)}, {v(d1)}")


def ex_bases(A):
    A(f"s_mul_i32 {s(sT0)}, {s(sX)}, {L.PL_G}")
    A(f"s_add_u32 {s(sPL)}, {s(sT0)}, {L.PL}")
    A(f"s_lshl_b32 {s(sT0)}, {s(sX)}, 20")
    A(f"s_add_u32 {s(sT0)}, {s(sT0)}, {L.EXM}")
    A(f"s_add_u32 {s(sMRw)}, {s(sT0)}, {s(sPar)}")
    A(f"s_xor_b32 {s(sML)}, {s(sMRw)}, 8192")
    A(f"s_xor_b32 {s(sMRr)}, {s(sMRw)}, {1 << 20}")
    A(f"s_mov_b32 {s(sMLb)}, {s(sML)}")
    A(f"s_lshl_b32 {s(sT0)}, {s(sX)}, 20")
    A(f"s_lshl_b32 {s(sT1)}, {s(sH)}, 15")
    A(f"s_add_u32 {s(sT0)}, {s(sT0)}, {s(sT1)}")
    A(f"s_xor_b32 {s(sT1)}, {s(sPar)}, 8192")
    A(f"s_add_u32 {s(sT0)}, {s(sT0)}, {s(sT1)}")
    A(f"s_add_u32 {s(sVXw)}, {s(sT0)}, {L.EXV}")
    A(f"s_xor_b32 {s(sVXr)}, {s(sVXw)}, {1 << 20}")


def prologue(A, lf):
    l, n, g, t0, t1, t2, t3 = 1, 2, 3, 4, 5, 6, 7
    uw, un, rw, rn = 8, 9, 10, 11
    b1w, b1n, b3w, b3n = 12, 13, 14, 15
    dq, dn, ow, on = 144, 145, 146, 147
    lane_fields(A, n, g)
    A(f"v_and_b32 {v(l)}, 63, v0")
    A.c("exchange lines: tags set to 1, broadcast slots set to all-ones")
    for i in range(4):
        A(f"v_mov_b32 {v(16 + i)}, -1")
    partial_addrs(A, n, g, t0, t1, 20, 21)
    ex_bases(A)
    A(f"buffer_store_dwordx4 v[16:19], v20, {s(SW, 4)}, {s(sPL)} offen {lf}")
    A(f"buffer_store_dword v16, v21, {s(SW, 4)}, {s(sPL)} offen {lf}")
    A(f"v_lshlrev_b32 {v(t0)}, 2, v0")
    A(f"v_lshlrev_b32 {v(t1)}, 4, v0")
    for off in (0, 4096, 16384, 20480):
        A(f"s_add_u32 {s(sT0)}, {s(sVXw)}, {off}")
        A(f"buffer_store_dwordx4 v[16:19], {v(t1)}, {s(SW, 4)}, {s(sT0)} offen sc1")
        A(f"s_add_u32 {s(sT0)}, {s(sT0)}, {L.EX2}")
        A(f"buffer_store_dwordx4 v[16:19], {v(t1)}, {s(SW, 4)}, {s(sT0)} offen sc1")
    A(f"s_lshl_b32 {s(sT1)}, {s(sH)}, 15")
    for k in range(2):
        for sb, fl, ex in ((sML, lf, 0), (sMRw, "sc1", 0), (sMRw, "sc1", L.EX2)):
            A(f"s_add_u32 {s(sT0)}, {s(sb)}, {s(sT1)}")
            if ex:
                A(f"s_add_u32 {s(sT0)}, {s(sT0)}, {ex}")
            A(f"buffer_store_dwordx4 v[16:19], {v(t1)}, {s(SW, 4)}, {s(sT0)} offen {fl}")
            A(f"s_add_u32 {s(sT0)}, {s(sT0)}, 4096")
            A(f"buffer_store_dword v16, {v(t0)}, {s(SW, 4)}, {s(sT0)} offen {fl}")
        A(f"s_add_u32 {s(sT1)}, {s(sT1)}, 16384")
    A.c("DMA lane parts")
    A(f"s_lshr_b32 {s(sT0)}, {s(sWv)}, 1")
    A(f"s_lshl_b32 {s(sT0)}, {s(sT0)}, 3")
    A(f"s_lshl_b32 {s(sT1)}, {s(sWv)}, 4")
    A(f"v_lshlrev_b32 {v(t0)}, 1, {v(g)}")
    A(f"v_or_b32 {v(t0)}, {s(sT0)}, {v(t0)}")
    A(f"v_xor_b32 {v(t0)}, {v(t0)}, {v(n)}")
    A(f"v_lshlrev_b32 {v(uw)}, 4, {v(t0)}")
    A(f"v_add_u32 {v(rw)}, {s(sT1)}, {v(g)}")
    A(f"v_lshrrev_b32 {v(t0)}, 3, {v(l)}")
    A(f"v_add_u32 {v(rn)}, {s(sT1)}, {v(t0)}")
    A(f"v_lshrrev_b32 {v(t1)}, 1, {v(t0)}")
    A(f"v_xor_b32 {v(t1)}, {v(t1)}, {v(t0)}")
    A(f"v_and_b32 {v(t1)}, 2, {v(t1)}")
    A(f"s_lshr_b32 {s(sT0)}, {s(sT0)}, 1")
    A(f"v_or_b32 {v(t1)}, {s(sT0)}, {v(t1)}")
    A(f"v_and_b32 {v(t0)}, 7, {v(l)}")
    A(f"v_xor_b32 {v(t0)}, {v(t0)}, {v(t1)}")
    A(f"v_lshlrev_b32 {v(un)}, 4, {v(t0)}")
    A(f"v_lshlrev_b32 {v(dq)}, 13, {v(rw)}")
    A(f"v_lshlrev_b32 {v(dn)}, 13, {v(rn)}")
    A(f"v_mul_u32_u24 {v(ow)}, 1280, {v(rw)}")
    A(f"v_mul_u32_u24 {v(on)}, 1280, {v(rn)}")

    def tr_base(typ, bw, bn):
        A(f"v_lshrrev_b32 {v(t0)}, 2, {v(n)}")
        A(f"v_and_b32 {v(t2)}, 1, {v(g)}")
        A(f"v_lshrrev_b32 {v(t3)}, 1, {v(g)}")
        if typ == 1:
            A(f"v_lshl_add_u32 {v(t1)}, {v(t2)}, 5, {v(t0)}")
            A(f"v_lshl_add_u32 {v(t1)}, {v(t3)}, 2, {v(t1)}")
        else:
            A(f"v_lshlrev_b32 {v(t1)}, 4, {v(t3)}")
            A(f"v_lshl_add_u32 {v(t1)}, {v(t2)}, 2, {v(t1)}")
            A(f"v_lshrrev_b32 {v(t2)}, 1, {v(t0)}")
            A(f"v_lshl_add_u32 {v(t1)}, {v(t2)}, 3, {v(t1)}")
            A(f"v_and_b32 {v(t2)}, 1, {v(t0)}")
            A(f"v_add_u32 {v(t1)}, {v(t1)}, {v(t2)}")
        A.c("t2 = (b1^b2) | (b5^b3)<<1 of the row")
        A(f"v_lshrrev_b32 {v(t2)}, 1, {v(t1)}")
        A(f"v_xor_b32 {v(t2)}, {v(t2)}, {v(t1)}")
        A(f"v_bfe_u32 {v(t2)}, {v(t2)}, 1, 1")
        A(f"v_lshrrev_b32 {v(t3)}, 2, {v(t1)}")
        A(f"v_xor_b32 {v(t3)}, {v(t3)}, {v(t1)}")
        A(f"v_bfe_u32 {v(t3)}, {v(t3)}, 3, 1")
        A(f"v_lshl_add_u32 {v(t2)}, {v(t3)}, 1, {v(t2)}")
        A(f"v_bfe_u32 {v(t0)}, {v(n)}, 1, 1")
        A(f"v_lshl_add_u32 {v(bn)}, {v(t2)}, 1, {v(t0)}")
        A(f"v_lshlrev_b32 {v(bn)}, 4, {v(bn)}")
        A(f"v_lshl_add_u32 {v(bn)}, {v(t1)}, 7, {v(bn)}")
        A(f"v_and_b32 {v(t3)}, 1, {v(t1)}")
        A(f"v_lshl_add_u32 {v(t2)}, {v(t2)}, 1, {v(t3)}")
        A(f"v_lshl_add_u32 {v(bw)}, {v(t2)}, 1, {v(t0)}")
        A(f"v_lshlrev_b32 {v(bw)}, 4, {v(bw)}")
        A(f"v_lshl_add_u32 {v(bw)}, {v(t1)}, 8, {v(bw)}")
        A(f"v_and_b32 {v(t3)}, 1, {v(n)}")
        A(f"v_lshl_add_u32 {v(bw)}, {v(t3)}, 3, {v(bw)}")
        A(f"v_lshl_add_u32 {v(bn)}, {v(t3)}, 3, {v(bn)}")

    tr_base(1, b1w, b1n)
    tr_base(3, b3w, b3n)

    sQ, sK, sV = 64, 68, 72
    sHo, sHv, sMb, sMv, sXr, sOb, sXw, sXn, sXo, sOblk = 76, 77, 78, 79, 80, 81, 52, 53, 62, 63
    srd(A, sQ, P_WQ, 640 * 8192)
    srd(A, sK, P_WK, 640 * 8192)
    srd(A, sV, P_WV, 640 * 8192)
    srd(A, ST, P_WO, 4096 * 1280)
    A(f"s_lshl_b32 {s(sHo)}, {s(sH)}, 8")
    A(f"s_lshl_b32 {s(sT0)}, {s(sX)}, 7")
    A(f"s_add_u32 {s(sHv)}, {s(sHo)}, {s(sT0)}")
    A(f"s_lshl_b32 {s(sMb)}, {s(sWv)}, 12")
    A(f"s_lshl_b32 {s(sMv)}, {s(sWv)}, 11")
    A(f"s_mul_i32 {s(sXr)}, {s(sX)}, {320 * 8192}")
    A(f"s_mul_i32 {s(sOb)}, {s(sH)}, {128 * 1280}")
    A(f"s_mul_i32 {s(sT0)}, {s(sX)}, 640")
    A(f"s_add_u32 {s(sOb)}, {s(sOb)}, {s(sT0)}")
    A(f"s_lshl_b32 {s(sXw)}, {s(sWv)}, 6")
    sXk = 82
    A(f"s_lshl_b32 {s(sXk)}, {s(sX)}, 5")
    A(f"s_xor_b32 {s(sXk)}, {s(sXk)}, {s(sXw)}")
    A(f"s_lshl_b32 {s(sXn)}, {s(sWv)}, 5")
    A(f"s_and_b32 {s(sXo)}, {s(sWv)}, 1")
    A(f"s_lshl_b32 {s(sXo)}, {s(sXo)}, 7")
    A(f"s_lshr_b32 {s(sOblk)}, {s(sWv)}, 1")
    A(f"s_lshl_b32 {s(sOblk)}, {s(sOblk)}, 14")

    def issue(c):
        base = (c % 4) * 40960
        if c < 10:
            if c < 5:
                A(f"s_add_u32 {s(sT1)}, {s(sXr)}, {64 * c * 8192}")
            else:
                A(f"s_sub_u32 {s(sT1)}, {64 * c * 8192}, {s(sXr)}")
            A(f"s_add_u32 {s(sT2)}, {s(sT1)}, {s(sHv)}")
            A(f"s_add_u32 {s(sT1)}, {s(sT1)}, {s(sHo)}")
            wide = ((sQ, 0), (sK, 0))
            nar = (sV, sT2, 0)
            rs, rowW, rowN = 8192, dq, dn
        else:
            A(f"s_xor_b32 {s(sT1)}, {s(sX)}, {c - 10}")
            A(f"s_mul_i32 {s(sT1)}, {s(sT1)}, {64 * 1280}")
            A(f"s_add_u32 {s(sT1)}, {s(sT1)}, {s(sOb)}")
            wide = ((ST, 0), (ST, 256))
            nar = (ST, sT1, 512)
            rs, rowW, rowN = 1280, ow, on
        for i in range(4):
            A(f"v_xor_b32 {v(t0)}, {64 * (i & 1) + 128 * (i >> 1)}, {v(uw)}")
            A(f"v_add_u32 {v(t0)}, {v(t0)}, {v(rowW)}")
            for mi, (sd, co) in enumerate(wide):
                A(f"s_add_u32 m0, {s(sMb)}, {base + 16384 * mi + i * 1024}")
                A(f"s_add_u32 {s(sT0)}, {s(sT1)}, {4 * i * rs + co}")
                A(f"buffer_load_dwordx4 {v(t0)}, {s(sd, 4)}, {s(sT0)} offen lds")
        for i in range(2):
            A(f"v_xor_b32 {v(t0)}, {64 * i}, {v(un)}")
            A(f"v_add_u32 {v(t0)}, {v(t0)}, {v(rowN)}")
            A(f"s_add_u32 m0, {s(sMv)}, {base + 32768 + i * 1024}")
            A(f"s_add_u32 {s(sT0)}, {s(nar[1])}, {8 * i * rs + nar[2]}")
            A(f"buffer_load_dwordx4 {v(t0)}, {s(nar[0], 4)}, {s(sT0)} offen lds")

    def addr(dst, basereg, sx, xconst, add_s, add_c):
        A(f"v_xor_b32 {v(dst)}, {s(sx)}, {v(basereg)}")
        if xconst:
            A(f"v_xor_b32 {v(dst)}, {xconst}, {v(dst)}")
        if add_s is not None:
            A(f"v_add_u32 {v(dst)}, {s(add_s)}, {v(dst)}")
        if add_c:
            A(f"v_add_u32 {v(dst)}, {add_c}, {v(dst)}")

    def consume(c):
        base = (c % 4) * 40960
        typ = 3 if (c >= 10 or c % 5 == 4) else 1
        bw, bn = (b1w, b1n) if typ == 1 else (b3w, b3n)
        for u in range(2):
            for jj in range(2):
                if typ == 1:
                    row, xw, xn = 16 * jj + 8 * u, 128 * u, 64 * u
                else:
                    row, xw, xn = 32 * u + 2 * jj, 128 * u + 64 * jj, 64 * u + 32 * jj
                off = 4 * u + 2 * jj
                if c < 10:
                    for t in range(2):
                        addr(t1, bw, sXk, xw ^ (32 * t), None, base)
                        addr(t0, bw, sXw, xw ^ (32 * t), None, base)
                        A(f"ds_read_b64_tr_b16 {fill_dst(('q', t, c), off)}, {v(t0)} offset:{row * 256}")
                        A(f"ds_read_b64_tr_b16 {fill_dst(('k', t, c), off)}, {v(t1)} offset:{16384 + row * 256}")
                    addr(t0, bn, sXn, xn, None, base)
                    A(f"ds_read_b64_tr_b16 {fill_dst(('v', 0, c), off)}, {v(t0)} offset:{32768 + row * 128}")
                else:
                    for t in range(4):
                        addr(t0, bw, sXo, xw ^ (32 * t), sOblk, base)
                        A(f"ds_read_b64_tr_b16 {fill_dst(('o', t, c - 10), off)}, {v(t0)} offset:{row * 256}")
                    addr(t0, bn, sXn, xn, None, base)
                    A(f"ds_read_b64_tr_b16 {fill_dst(('o', 4, c - 10), off)}, {v(t0)} offset:{32768 + row * 128}")

    for c in range(3):
        issue(c)
    for c in range(12):
        A(f"s_waitcnt vmcnt({min(20, 10 * (11 - c))}) lgkmcnt(0)")
        A("s_barrier")
        if c == 0:
            A.c("arrive: exchange lines are initialised; one byte counter per compute die and group")
            skip = A.newlabel("arr")
            A(f"s_cmp_lg_u32 {s(sWv)}, 0")
            A(f"s_cbranch_scc1 {skip}")
            A(f"s_mov_b64 {s(sEx, 2)}, exec")
            A("s_mov_b64 exec, 1")
            A(f"s_getreg_b32 {s(sT0)}, hwreg(HW_REG_XCC_ID, 0, 3)")
            A(f"s_lshl_b32 {s(sT0)}, {s(sT0)}, 3")
            A(f"s_lshl_b64 {s(sT2, 2)}, 1, {s(sT0)}")
            A(f"s_lshl_b32 {s(sT0)}, {s(sX)}, 3")
            A(f"v_mov_b32 {v(t1)}, {s(sT0)}")
            A(f"v_mov_b32 {v(t2)}, {s(sT2)}")
            A(f"v_mov_b32 {v(t3)}, {s(sT3)}")
            A(f"global_atomic_add_x2 {v(t1)}, {v(t2, 2)}, {s(P_DBG, 2)} offset:{L.D_RINIT} sc1")
            A(f"s_mov_b64 exec, {s(sEx, 2)}")
            A.label(skip)
        if c + 3 < 12:
            issue(c + 3)
        consume(c)
    A("s_waitcnt lgkmcnt(0)")
    A("s_barrier")
    A(f"s_lshl_b32 {s(sT0)}, {s(sWv)}, 15")
    A(f"s_add_u32 {s(sT0)}, {s(sT0)}, {WST}")
    A(f"v_lshlrev_b32 {v(t0)}, 4, {v(l)}")
    A(f"v_add_u32 {v(t0)}, {s(sT0)}, {v(t0)}")
    for i in range(32):
        A(f"ds_write_b128 {v(t0)}, {v(HQ + 4 * i, 4)} offset:{1024 * i}")
    A("s_waitcnt lgkmcnt(0)")


def persistent(A):
    n, g, q, hf, t0, t1, l, mm = range(X, X + 8)
    lane_fields(A, n, g)
    A(f"v_and_b32 {v(l)}, 63, v0")
    A(f"v_lshrrev_b32 {v(t0)}, 2, {v(n)}")
    A(f"v_and_b32 {v(t1)}, 1, {v(n)}")
    A(f"v_lshl_add_u32 {v(q)}, {v(t0)}, 1, {v(t1)}")
    A(f"v_bfe_u32 {v(hf)}, {v(n)}, 1, 1")
    A(f"v_lshl_add_u32 {v(mm)}, {v(g)}, 1, {v(hf)}")
    A(f"v_mul_u32_u24 {v(vIdx)}, 0xaaaa, {v(hf)}")
    A(f"v_add_u32 {v(vIdx)}, 0x4444, {v(vIdx)}")
    for i in range(4):
        A(f"v_mov_b32 {v(vOnes + i)}, 0x3f803f80")
    A(f"v_lshlrev_b32 {v(t0)}, 4, {v(t1)}")
    A(f"v_mov_b32 {v(t1)}, 0x3f80")
    A(f"v_lshlrev_b32 {v(t0)}, {v(t0)}, {v(t1)}")
    A(f"v_bfe_u32 {v(t1)}, {v(n)}, 1, 2")
    for i in range(4):
        A(f"v_cmp_eq_u32 vcc, {i}, {v(t1)}")
        A(f"v_cndmask_b32 {v(vSel + i)}, 0, {v(t0)}, vcc")
    for r in (vPm, vVo, vVp):
        A(f"v_mov_b32 {v(r + 1)}, 0")
    A(f"v_lshlrev_b32 {v(aLin)}, 4, {v(l)}")
    A(f"s_lshl_b32 {s(sT0)}, {s(sWv)}, 15")
    A(f"s_add_u32 {s(sT0)}, {s(sT0)}, {WST}")
    A(f"v_add_u32 {v(aWst)}, {s(sT0)}, {v(aLin)}")
    A(f"v_lshlrev_b32 {v(aW1)}, 4, v0")
    A(f"v_lshlrev_b32 {v(aW4)}, 2, v0")
    A(f"v_lshlrev_b32 {v(t0)}, 7, {v(mm)}")
    A(f"v_lshl_add_u32 {v(t0)}, {v(q)}, 4, {v(t0)}")
    rolB, rolE = A.newlabel("roleB"), A.newlabel("roleE")
    A(f"s_mov_b32 {s(sOwn)}, 0")
    A(f"s_cmp_ge_u32 {s(sWv)}, 2")
    A(f"s_cbranch_scc1 {rolB}")
    A.c("waves 0,1: reduce line 32w + h (lines below 40), stage the keys")
    A(f"s_lshl_b32 {s(sT0)}, {s(sWv)}, 5")
    A(f"s_add_u32 {s(sT0)}, {s(sT0)}, {s(sH)}")
    A(f"s_cmp_lt_u32 {s(sT0)}, 40")
    A(f"s_cselect_b32 {s(sOwn)}, 1, 0")
    A(f"s_cselect_b32 {s(sT0)}, {s(sT0)}, 0")
    A(f"s_lshl_b32 {s(sT1)}, {s(sT0)}, 12")
    A(f"v_add_u32 {v(aR1)}, {s(sT1)}, {v(t0)}")
    A(f"s_lshl_b32 {s(sT1)}, {s(sT0)}, 7")
    A(f"v_and_b32 {v(t0)}, 1, {v(n)}")
    A(f"v_lshl_add_u32 {v(t0)}, {v(g)}, 1, {v(t0)}")
    A(f"v_lshlrev_b32 {v(t0)}, 4, {v(t0)}")
    A(f"v_bfe_u32 {v(t1)}, {v(n)}, 1, 2")
    A(f"v_lshl_add_u32 {v(t0)}, {v(t1)}, 2, {v(t0)}")
    A(f"v_add_u32 {v(aR2)}, {s(sT1)}, {v(t0)}")
    A(f"s_lshl_b32 {s(sT0)}, {s(sWv)}, 12")
    A(f"v_add_u32 {v(aR3)}, {s(sT0)}, {v(aLin)}")
    A(f"v_mov_b32 {v(aR4)}, 0")
    A(f"s_branch {rolE}")
    A.label(rolB)
    A.c("waves 2,3: stage fragments 2w', 2w'+1 and one half of the fifth fragment")
    A(f"s_and_b32 {s(sT2)}, {s(sWv)}, 1")
    A(f"s_lshl_b32 {s(sT0)}, {s(sT2)}, 11")
    A(f"v_add_u32 {v(aR1)}, {s(sT0)}, {v(t0)}")
    A(f"v_add_u32 {v(aR3)}, {s(sT0)}, {v(aLin)}")
    A(f"s_lshl_b32 {s(sT0)}, {s(sT2)}, 9")
    A(f"s_add_u32 {s(sT0)}, {s(sT0)}, 4096")
    A(f"v_lshlrev_b32 {v(t0)}, 3, {v(l)}")
    A(f"v_add_u32 {v(aR4)}, {s(sT0)}, {v(t0)}")
    A(f"v_lshrrev_b32 {v(t0)}, 5, {v(l)}")
    A(f"v_lshlrev_b32 {v(aR2)}, 8, {v(t0)}")
    A(f"v_bfe_u32 {v(t0)}, {v(l)}, 2, 1")
    A(f"v_lshl_add_u32 {v(aR2)}, {v(t0)}, 7, {v(aR2)}")
    A(f"v_bfe_u32 {v(t0)}, {v(l)}, 3, 2")
    A(f"v_lshl_add_u32 {v(aR2)}, {v(t0)}, 5, {v(aR2)}")
    A(f"v_and_b32 {v(t0)}, 3, {v(l)}")
    A(f"v_lshl_add_u32 {v(aR2)}, {v(t0)}, 3, {v(aR2)}")
    A(f"v_add_u32 {v(aR2)}, {s(sT0)}, {v(aR2)}")
    A.label(rolE)
    A(f"s_lshl_b32 {s(sT0)}, {s(sWv)}, 8")
    A.c("exchange write/read addresses")
    A(f"v_lshlrev_b32 {v(t0)}, 2, {v(g)}")
    A(f"v_lshl_add_u32 {v(t0)}, {v(n)}, 4, {v(t0)}")
    A(f"v_add_u32 {v(aVP)}, {s(sT0)}, {v(t0)}")
    A(f"s_lshl_b32 {s(sT0)}, {s(sWv)}, 9")
    A(f"v_add_u32 {v(t0)}, {s(sT0)}, {v(t0)}")
    A(f"v_add_u32 {v(aQW)}, {QX}, {v(t0)}")
    A(f"v_lshlrev_b32 {v(t0)}, 1, {v(t0)}")
    A(f"v_add_u32 {v(aKW)}, {KX}, {v(t0)}")
    A(f"v_lshrrev_b32 {v(t0)}, 1, {v(g)}")
    A(f"v_lshlrev_b32 {v(t0)}, 4, {v(t0)}")
    A(f"v_and_b32 {v(t1)}, 1, {v(g)}")
    A(f"v_lshl_add_u32 {v(t0)}, {v(t1)}, 2, {v(t0)}")
    A(f"v_lshrrev_b32 {v(t1)}, 2, {v(n)}")
    A(f"v_add_u32 {v(t0)}, {v(t0)}, {v(t1)}")
    A(f"v_and_b32 {v(t1)}, 1, {v(n)}")
    A(f"v_lshlrev_b32 {v(t1)}, 3, {v(t1)}")
    A(f"v_lshl_add_u32 {v(aQR)}, {v(t0)}, 4, {v(t1)}")
    A(f"v_add_u32 {v(aQR)}, {QX}, {v(aQR)}")
    A(f"v_and_b32 {v(t1)}, 3, {v(n)}")
    A(f"v_lshlrev_b32 {v(t1)}, 3, {v(t1)}")
    A(f"v_lshl_add_u32 {v(aKR)}, {v(t0)}, 5, {v(t1)}")
    A(f"s_lshl_b32 {s(sT0)}, {s(sX)}, 9")
    A(f"v_xor_b32 {v(aKR)}, {s(sT0)}, {v(aKR)}")
    A(f"v_add_u32 {v(aKR)}, {KX}, {v(aKR)}")
    A(f"v_and_b32 {v(t0)}, 7, {v(n)}")
    A(f"v_mul_u32_u24 {v(t0)}, {ORS}, {v(t0)}")
    A(f"v_lshl_add_u32 {v(t0)}, {v(g)}, 3, {v(t0)}")
    A(f"s_lshl_b32 {s(sT0)}, {s(sWv)}, 5")
    A(f"s_add_u32 {s(sT0)}, {s(sT0)}, {OX}")
    A(f"v_add_u32 {v(aOW)}, {s(sT0)}, {v(t0)}")
    A(f"v_mul_u32_u24 {v(t0)}, {ORS}, {v(q)}")
    A(f"v_lshl_add_u32 {v(t0)}, {v(mm)}, 4, {v(t0)}")
    A(f"v_add_u32 {v(aOR)}, {OX}, {v(t0)}")
    partial_addrs(A, n, g, t0, t1, aP4, aP1)
    A.c("initial memory: gather A_mem0 into the staged fragment image")
    srd(A, ST, P_MEM0, 8 * 1280)
    d = X + 8
    A(f"v_mul_u32_u24 {v(t0)}, 1280, {v(q)}")
    A(f"v_lshl_add_u32 {v(t1)}, {v(mm)}, 2, {v(t0)}")
    A(f"v_lshl_add_u32 {v(t0)}, {v(mm)}, 4, {v(t0)}")
    A(f"s_mul_i32 {s(sT0)}, {s(sX)}, 640")
    A(f"s_sub_u32 {s(sT1)}, 640, {s(sT0)}")
    A(f"s_lshl_b32 {s(sT2)}, {s(sWv)}, 7")
    for k, sb in enumerate((sT0, sT1)):
        A(f"s_add_u32 {s(sT3)}, {s(sb)}, {s(sT2)}")
        for tau in range(4):
            A(f"buffer_load_dword {v(d + 8 * k + tau)}, {v(t1)}, {s(ST, 4)}, {s(sT3)} offen offset:{32 * tau}")
        A(f"buffer_load_dwordx4 {v(d + 8 * k + 4, 4)}, {v(t0)}, {s(ST, 4)}, {s(sb)} offen offset:512")
    A("s_waitcnt vmcnt(0)")
    for k in range(2):
        A(f"ds_write_b128 {v(aW1)}, {v(d + 8 * k, 4)} offset:{MEM + 5120 * k}")
        A(f"ds_write_b128 {v(aLin)}, {v(d + 8 * k + 4, 4)} offset:{MEM + 5120 * k + 4096}")


def step_bases(A):
    A(f"s_lshl_b32 {s(sT0)}, {s(sH)}, 13")
    A(f"s_add_u32 {s(sKT0)}, {s(sT0)}, {L.KT}")
    A(f"s_add_u32 {s(sKT1)}, {s(sKT0)}, 4096")
    A(f"s_lshl_b32 {s(sW1k)}, {s(sWv)}, 10")
    A(f"s_lshl_b32 {s(sT1)}, {s(sX)}, 12")
    A(f"s_add_u32 {s(sT0)}, {s(sT0)}, {s(sT1)}")
    A(f"s_add_u32 {s(sVTo)}, {s(sT0)}, {L.VT}")
    A(f"s_xor_b32 {s(sVTp)}, {s(sVTo)}, 4096")
    A(f"s_lshl_b32 {s(sT0)}, {s(sH)}, 11")
    A(f"s_lshl_b32 {s(sT1)}, {s(sX)}, 8")
    A(f"s_add_u32 {s(sKM)}, {s(sT0)}, {s(sT1)}")
    A(f"s_add_u32 {s(sKM)}, {s(sKM)}, {L.KM - QX}")
    A(f"s_lshl_b32 {s(sT1)}, {s(sX)}, 10")
    A(f"s_add_u32 {s(sT0)}, {s(sT0)}, {s(sT1)}")
    A(f"s_add_u32 {s(sVM)}, {s(sT0)}, {L.VM}")
    A(f"s_mov_b32 {s(sStep)}, 0\ns_mov_b32 {s(sTag)}, 0\ns_mov_b32 {s(sTagV)}, 0")
    A(f"s_mov_b32 {s(sVXbw)}, {s(sVXw)}\ns_mov_b32 {s(sVXbr)}, {s(sVXr)}")
    A(f"s_add_u32 {s(SW2)}, {s(SW)}, {L.EX2}")
    A(f"s_addc_u32 {s(SW2 + 1)}, {s(SW + 1)}, 0")
    A(f"s_mov_b32 {s(SW2 + 2)}, {L.WS_BYTES - L.EX2}")
    A(f"s_mov_b32 {s(SW2 + 3)}, 0x20000")
    A(f"s_cmp_ge_u32 {s(sWv)}, 2")
    A(f"s_cselect_b64 {s(sEx, 2)}, -1, 0")
    A(f"s_mov_b32 {s(sCs)}, 0x3e0293ee")


def kv_m0(A, i):
    A(f"s_add_u32 m0, {s(sW1k)}, {(KTL, KTL + 4096, MEM, MEM + 4096)[i]}")


def kv_dma(A, i):
    sb = (sKT0, sKT1, sVTo, sVTp)[i]
    A(f"buffer_load_dwordx4 {v(aW1)}, {s(SW, 4)}, {s(sb)} offen sc1 lds")
    A(f"s_add_u32 {s(sb)}, {s(sb)}, {32 * 8192}")


def vt_read(A):
    A(f"ds_read_b128 {v(vVt, 4)}, {v(aW1)} offset:{MEM}")
    A(f"ds_read_b128 {v(vVt + 4, 4)}, {v(aW1)} offset:{MEM + 4096}")


def zero_acc(A):
    for i in range(20):
        A(f"v_mov_b32 {v(U + i)}, 0")


def w_read(A, i, hh):
    A(f"ds_read_b128 {v(BUF[i % 6] + 4 * hh, 4)}, {v(aWst)} offset:{2048 * i + 1024 * hh}")


def q_stage(A):
    for i in range(6):
        for hh in range(2):
            w_read(A, i, hh)


def smf(A, d, av, b):
    A(f"v_smfmac_f32_16x16x64_bf16 {v(d, 4)}, {v(av, 4)}, {b}, {v(vIdx)}")


def mf32(A, d, av, bv, c=None):
    A(f"v_mfma_f32_16x16x32_bf16 {v(d, 4)}, {v(av, 4)}, {v(bv, 4)}, {'0' if c is None else v(c, 4)}")


def mf16(A, d, av, bv):
    A(f"v_mfma_f32_16x16x16_bf16 {v(d, 4)}, {v(av, 2)}, {v(bv, 2)}, {v(d, 4)}")


def add0(A, acc):
    A(f"v_add_f32 {v(acc)}, {v(acc)}, {v(acc + 2)}")


def add1(A, acc):
    A(f"v_add_f32 {v(acc + 1)}, {v(acc + 1)}, {v(acc + 3)}")


def cvt(A, dst, acc):
    A(f"v_cvt_pk_bf16_f32 {v(dst)}, {v(acc)}, {v(acc + 1)}")


def publish_v(A):
    A(f"buffer_store_dword {v(vVo)}, {v(aVP)}, {s(SW, 4)}, {s(sVM)} offen sc1")


def publish_k(A, src):
    A(f"buffer_store_dword {v(src)}, {v(aQW)}, {s(SW, 4)}, {s(sKM)} offen sc1")


def delay(A, n):
    for _ in range(n // 4):
        A("s_nop 15")
    if n % 4:
        A(f"s_nop {4 * (n % 4) - 1}")


def step_loop(A, lf, hooks):
    QA, KA, VA = U, U + 8, U + 16
    S0, S1, SM = U, U + 4, T
    O0, O1, LA = U + 8, U + 12, U + 20
    LM, RM, H1 = X + 20, X + 30, X + 12
    m, tt = T2a, T2b
    top, entry, done = A.newlabel("step"), A.newlabel("entry"), A.newlabel("done")
    slow = Asm()
    slow.uid = A.uid + 500

    def nop(k):
        A(f"s_nop {k}")

    def q(t, f):
        smf(A, QA + 4 * t, X + 4 * f, operand(("q", t, f)))

    def k(t, f):
        smf(A, KA + 4 * t, X + 4 * f, operand(("k", t, f)))

    def vv(f):
        smf(A, VA, X + 4 * f, operand(("v", 0, f)))

    def m_load(B, dst, sb, i, sw=SW):
        if i < 2:
            B(f"buffer_load_dwordx4 {v(dst + 4 * i, 4)}, {v(aR1)}, {s(sw, 4)}, {s(sb)} offen offset:{1024 * i} sc1")
        else:
            B(f"buffer_load_dwordx2 {v(dst + 8, 2)}, {v(aR2)}, {s(sw, 4)}, {s(sb)} offen sc1")

    def m_loads(B, dst, sb, sw=SW):
        for i in range(3):
            m_load(B, dst, sb, i, sw)

    def m_write(B, src, i, off):
        if i < 2:
            B(f"ds_write_b128 {v(aR3)}, {v(src + 4 * i, 4)} offset:{off + 1024 * i}")
        else:
            B(f"ds_write_b64 {v(aR4)}, {v(src + 8, 2)} offset:{off}")

    def m_max(B, src, i):
        if i == 0:
            B(f"v_max3_u32 {v(m)}, {v(src)}, {v(src + 1)}, {v(src + 2)}")
        elif i < 4:
            B(f"v_max3_u32 {v(m)}, {v(m)}, {v(src + 1 + 2 * i)}, {v(src + 2 + 2 * i)}")
        else:
            B(f"v_max_u32 {v(m)}, {v(m)}, {v(src + 9)}")

    def kt_read(i):
        A(f"ds_read_b128 {v(Y + 4 * i, 4)}, {v(aLin)} offset:{KTL + 1024 * i}")

    def q_tr(i):
        A(f"ds_read_b64_tr_b16 {v(Z + 2 * i, 2)}, {v(aQR)} offset:{(32 * (i >> 1) + 8 * (i & 1)) * 16}")

    def k_tr(i):
        A(f"ds_read_b64_tr_b16 {v(Y + 2 * i, 2)}, {v(aKR)} offset:{(32 * (i >> 1) + 8 * (i & 1)) * 32}")

    def vx_load(B):
        B(f"buffer_load_dword {v(vVp)}, {v(aW4)}, {s(SW, 4)}, {s(sVXr)} offen sc1")

    A(f"s_branch {entry}")
    A.label(top)
    delay(A, D2)
    phase(A, "pre-h2")
    def local_round(B, extra):
        for i in range(3):
            B(f"s_waitcnt vmcnt({2 - i + extra})")
            m_write(B, LM, i, MEM)
        for i in range(5):
            m_max(B, LM, i)
        B(f"v_cmp_eq_u32 vcc, -1, {v(m)}")

    m_loads(A, LM, sML)
    if B5:
        A("s_barrier")
    delay(A, H2P)
    m_loads(A, RM, sML)
    local_round(A, 3)
    sl, lok = slow.newlabel("h2l"), A.newlabel("lok")
    A(f"s_cbranch_vccnz {sl}" if not NOWAIT else "s_nop 0")
    slow.label(sl)
    slow("s_mov_b64 exec, vcc")
    lp = slow.newlabel("h2lp")
    slow.label(lp)
    count(slow, 0)
    m_loads(slow, RM, sML)
    slow("s_mov_b64 exec, -1")
    slow("s_waitcnt vmcnt(3)")
    for i in range(5):
        m_max(slow, RM, i)
    slow(f"v_cmp_eq_u32 vcc, -1, {v(m)}")
    masked_retry(slow, lp)
    for i in range(3):
        m_write(slow, RM, i, MEM)
    slow(f"s_branch {lok}")
    A.label(lok)
    m_loads(A, RM, sMRr)
    phase(A, "h2 local")
    A.label(entry)
    A("s_waitcnt lgkmcnt(0)")
    A("s_barrier")
    phase(A, "B0a")
    for f in range(5):
        A(f"ds_read_b128 {v(X + 4 * f, 4)}, {v(aLin)} offset:{MEM + 1024 * f}")
    pend = [("m", f) for f in range(5)]

    def need(x):
        if x in pend:
            n = len(pend) - 1 - max(i for i, y in enumerate(pend) if y == x)
            A(f"s_waitcnt lgkmcnt({n})")
            del pend[:len(pend) - n]

    def stream(i, hh):
        w_read(A, i, hh)
        pend.append(("w", i))

    slot = 0
    for f in range(5):
        for kind, tl in (("q", 0), ("q", 1), ("v", 0)):
            need(("m", f))
            if (kind, tl, f) in LDSF:
                need(("w", LDSF.index((kind, tl, f))))
            q(tl, f) if kind == "q" else vv(f)
            if 1 <= slot <= 12:
                stream(6 + (slot - 1) // 2, (slot - 1) & 1)
            if R2 and slot == R2:
                A(f"s_mov_b64 exec, {s(sEx, 2)}")
                m_loads(A, LM, sMRr, SW2)
                A("s_mov_b64 exec, -1")
            slot += 1
    A("s_waitcnt lgkmcnt(0)")
    rolB, join = A.newlabel("stB"), A.newlabel("join")
    k(0, 0)
    A(f"s_cmp_ge_u32 {s(sWv)}, 2")
    A(f"s_cbranch_scc1 {rolB}")
    for i in range(4):
        k(0, 1 + i)
    k(1, 0)
    A(f"s_branch {join}")
    A.label(rolB)
    A(f"s_waitcnt vmcnt({3 if R2 else 0})")
    for i in range(4):
        k(0, 1 + i)
        if i < 3:
            m_write(A, RM, i, MEM + 5120)
        m_max(A, RM, i)
    k(1, 0)
    m_max(A, RM, 4)
    A(f"v_cmp_eq_u32 vcc, -1, {v(m)}")
    sl = slow.newlabel("h2r")
    A(f"s_cbranch_vccnz {sl}" if not NOWAIT else "s_nop 0")
    slow.label(sl)
    if R2:
        slow("s_waitcnt vmcnt(0)")
        for i in range(3):
            m_write(slow, LM, i, MEM + 5120)
        for i in range(5):
            m_max(slow, LM, i)
        slow(f"v_cmp_eq_u32 vcc, -1, {v(m)}")
        slow(f"s_cbranch_vccz {join}")
        sl = slow.newlabel("h2r2")
        slow.label(sl)
    count(slow, 1)
    m_loads(slow, RM, sMRr)
    slow("s_waitcnt vmcnt(0)")
    for i in range(3):
        m_write(slow, RM, i, MEM + 5120)
    for i in range(5):
        m_max(slow, RM, i)
    slow(f"v_cmp_eq_u32 vcc, -1, {v(m)}")
    retry(slow, sl)
    slow(f"s_branch {join}")
    A.label(join)
    phase(A, "local+h2r")
    A("s_waitcnt lgkmcnt(0)")
    A("s_barrier")
    phase(A, "B0b")
    if R2:
        A("s_waitcnt vmcnt(0)")
    A(f"ds_read_b128 {v(X + 20, 4)}, {v(aLin)} offset:{MEM + 5120}")
    for f in range(1, 5):
        k(1, f)
        A(f"ds_read_b128 {v(X + 20 + 4 * f, 4)}, {v(aLin)} offset:{MEM + 5120 + 1024 * f}")
    pend[:] = [("m", f) for f in range(5, 10)]
    for f in range(5, 10):
        need(("m", f))
        vv(f)
        if f > 5:
            stream(12 + (f - 6) // 2, (f - 6) & 1)
    q(0, 5); stream(14, 0); nop(1)
    q(0, 6); stream(14, 1); nop(0); add0(A, VA); add1(A, VA)
    q(0, 7); stream(15, 0); cvt(A, vVo, VA); A(f"v_and_or_b32 {v(m)}, {v(vVo)}, -2, {s(sTagV)}")
    q(0, 8); A(f"buffer_store_dword {v(m)}, {v(aW4)}, {s(SW, 4)}, {s(sVXw)} offen sc1")
    q(0, 9); stream(15, 1)
    if V2:
        A(f"buffer_store_dword {v(m)}, {v(aW4)}, {s(SW2, 4)}, {s(sVXw)} offen sc1")
    need(("w", 12))
    q(1, 5); nop(1)
    need(("w", 13))
    q(1, 6); nop(1)
    need(("w", 14))
    q(1, 7); kt_read(0); add0(A, QA)
    pend.append(("kt", 0))
    need(("w", 15))
    q(1, 8); kt_read(1); add1(A, QA)
    q(1, 9); kt_read(2); cvt(A, QA, QA)
    k(0, 5); A(f"ds_write_b32 {v(aQW)}, {v(QA)}"); nop(1)
    k(0, 6); kt_read(3); nop(0)
    k(0, 7); kt_read(4); add0(A, QA + 4)
    k(0, 8); kt_read(5); add1(A, QA + 4)
    k(0, 9); kt_read(6); cvt(A, QA + 4, QA + 4)
    k(1, 5); A(f"ds_write_b32 {v(aQW)}, {v(QA + 4)} offset:256"); nop(1)
    k(1, 6); kt_read(7); nop(0)
    k(1, 7); add0(A, KA)
    k(1, 8); add1(A, KA)
    A("s_waitcnt lgkmcnt(0)")
    A("s_barrier")
    phase(A, "B1")
    k(1, 9)
    for i in range(8):
        q_tr(i)
    if VXP == 0:
        vx_load(A)
    cvt(A, KA, KA)
    add0(A, KA + 4)
    add1(A, KA + 4)
    cvt(A, KA + 1, KA + 4)
    A(f"ds_write2_b32 {v(aKW)}, {v(KA)}, {v(KA + 1)} offset0:0 offset1:128")
    A("s_waitcnt lgkmcnt(7)")
    mf32(A, S0, Y, Z)
    mf32(A, S1, Y + 4, Z)
    A("s_waitcnt lgkmcnt(5)")
    mf32(A, S0, Y + 8, Z + 4, S0)
    if VXP == 1:
        vx_load(A)
    mf32(A, S1, Y + 12, Z + 4, S1)
    A(f"s_cmp_eq_u32 {s(sStep)}, {LAST}")
    A(f"s_cbranch_scc1 {done}")
    if hooks:
        hooks(A)
    A("s_waitcnt lgkmcnt(0)")
    A("s_barrier")
    phase(A, "remote qkv+B2")
    k_tr(0); k_tr(1)
    kv_m0(A, 0)
    mf32(A, S0, Y + 16, Z + 8, S0)
    k_tr(2); k_tr(3)
    mf32(A, S1, Y + 20, Z + 8, S1)
    k_tr(4); k_tr(5)
    mf32(A, S0, Y + 24, Z + 12, S0)
    k_tr(6); k_tr(7)
    mf32(A, S1, Y + 28, Z + 12, S1)
    if VXP == 2:
        vx_load(A)
    if V2:
        A(f"buffer_load_dword {v(vV2)}, {v(aW4)}, {s(SW2, 4)}, {s(sVXr)} offen sc1")
    kv_dma(A, 0)
    for ks in range(4):
        A(f"s_waitcnt lgkmcnt({6 - 2 * ks})")
        mf32(A, SM, Y + 4 * ks, Z + 4 * ks, None if ks == 0 else SM)
        if ks == 0:
            kv_m0(A, 1)
            A(f"v_max3_f32 {v(m)}, {v(S0)}, {v(S0 + 1)}, {v(S0 + 2)}")
        if ks == 1:
            publish_v(A)
            A(f"v_max3_f32 {v(m)}, {v(m)}, {v(S0 + 3)}, {v(S1)}")
        if ks == 2:
            publish_k(A, KA)
            A(f"v_max3_f32 {v(m)}, {v(m)}, {v(S1 + 1)}, {v(S1 + 2)}")
    kv_dma(A, 1)
    kv_m0(A, 2)
    for i in range(5):
        A(f"v_mov_b32 {v(OPACC[0] + i)}, 0")
    phase(A, "Smm")
    A(f"v_max3_f32 {v(tt)}, {v(S1 + 3)}, {v(SM)}, {v(SM + 1)}")
    A(f"v_max_f32 {v(m)}, {v(m)}, {v(tt)}")
    A(f"v_mov_b32 {v(tt)}, {v(m)}")
    A(f"v_permlane32_swap_b32 {v(m)}, {v(tt)}")
    A(f"v_max_f32 {v(m)}, {v(m)}, {v(tt)}")
    A(f"v_mov_b32 {v(tt)}, {v(m)}")
    A(f"v_permlane16_swap_b32 {v(m)}, {v(tt)}")
    A(f"v_max_f32 {v(m)}, {v(m)}, {v(tt)}")
    A(f"v_mul_f32 {v(m)}, {s(sCs)}, {v(m)}")
    vals = [S0 + i for i in range(8)] + [SM, SM + 1]
    for i, r in enumerate(vals):
        A(f"v_fma_f32 {v(r)}, {v(r)}, {s(sCs)}, -{v(m)}")
        if i:
            A(f"v_exp_f32 {v(vals[i - 1])}, {v(vals[i - 1])}")
        if EDMA and i == 1:
            kv_dma(A, 2)
            kv_m0(A, 3)
        if EDMA and i == 7:
            kv_dma(A, 3)
    A(f"v_exp_f32 {v(vals[9])}, {v(vals[9])}")
    for i in range(4):
        A(f"v_cvt_pk_bf16_f32 {v(S0 + i)}, {v(S0 + 2 * i)}, {v(S0 + 2 * i + 1)}")
    A(f"v_cvt_pk_bf16_f32 {v(vPm)}, {v(SM)}, {v(SM + 1)}")
    phase(A, "exp")
    zs = [OPACC[0] + i for i in range(5, 20)]

    def zero(n):
        for _ in range(n):
            if zs:
                A(f"v_mov_b32 {v(zs.pop(0))}, 0")

    mf32(A, LA, vOnes, S0)
    if not EDMA:
        kv_dma(A, 2)
    A(f"s_waitcnt vmcnt({(6 if EDMA else 5) + (1 if V2 else 0)})")
    A(f"v_bitop3_b32 {v(tt)}, {v(vVp)}, 1, {s(sTagV)} bitop3:0x48")
    mf32(A, O0, vVt, S0)
    A(f"v_cmp_ne_u32 vcc, 0, {v(tt)}")
    zero(1)
    mf32(A, O1, vVt + 4, S0)
    if not EDMA:
        kv_m0(A, 3)
    zero(1)
    mf16(A, LA, vOnes, vPm)
    zero(2)
    mf16(A, O0, vVo, vPm)
    sl, vok = slow.newlabel("vx"), A.newlabel("vok")
    A(f"s_cbranch_vccnz {sl}" if not NOWAIT else "s_nop 0")
    slow.label(sl)
    if V2:
        slow(f"s_waitcnt vmcnt({6 if EDMA else 5})")
        slow(f"v_mov_b32 {v(vVp)}, {v(vV2)}")
        slow(f"v_bitop3_b32 {v(tt)}, {v(vV2)}, 1, {s(sTagV)} bitop3:0x48")
        slow(f"v_cmp_ne_u32 vcc, 0, {v(tt)}")
        slow(f"s_cbranch_vccz {vok}")
        sl = slow.newlabel("vx2")
        slow.label(sl)
    count(slow, 2)
    vx_load(slow)
    slow("s_waitcnt vmcnt(0)")
    slow(f"v_bitop3_b32 {v(tt)}, {v(vVp)}, 1, {s(sTagV)} bitop3:0x48")
    slow(f"v_cmp_ne_u32 vcc, 0, {v(tt)}")
    retry(slow, sl)
    slow(f"s_branch {vok}")
    A.label(vok)
    mf16(A, O1, vVp, vPm)
    if not EDMA:
        kv_dma(A, 3)
    phase(A, "attn+vx")
    A(f"v_rcp_f32 {v(m)}, {v(LA)}")
    for i in range(4):
        A(f"v_mul_f32 {v(O0 + i)}, {v(O0 + i)}, {v(m)}")
    cvt(A, O0, O0)
    cvt(A, O0 + 1, O0 + 2)
    for i in range(4):
        A(f"v_mul_f32 {v(O1 + i)}, {v(O1 + i)}, {v(m)}")
    cvt(A, O1, O1)
    cvt(A, O1 + 1, O1 + 2)
    A(f"ds_write2_b64 {v(aOW)}, {v(O0, 2)}, {v(O1, 2)} offset0:0 offset1:16")
    zero(20)
    A("s_waitcnt lgkmcnt(0)")
    A("s_barrier")
    A(f"ds_read_b128 {v(vVt, 4)}, {v(aOR)}")
    A(f"ds_read_b128 {v(vVt + 4, 4)}, {v(aOR)} offset:128")
    phase(A, "norm+B3")

    def op(t, kf):
        smf(A, OPACC[t], vVt + 4 * kf, operand(("o", t, kf)))

    def tag(r):
        A(f"v_and_or_b32 {v(r)}, {v(r)}, -2, {s(sTag)}")

    A("s_waitcnt lgkmcnt(1)")
    op(0, 0)
    A("s_waitcnt lgkmcnt(0)")
    op(0, 1)
    op(1, 0); nop(1)
    op(1, 1); nop(2)
    op(2, 0); add0(A, OPACC[0])
    op(2, 1); add1(A, OPACC[0])
    op(3, 0); cvt(A, OPQ, OPACC[0])
    op(3, 1); add0(A, OPACC[1])
    op(4, 0); add1(A, OPACC[1])
    op(4, 1); cvt(A, OPQ + 1, OPACC[1])
    add0(A, OPACC[2]); add1(A, OPACC[2]); tag(OPQ); cvt(A, OPQ + 2, OPACC[2])
    add0(A, OPACC[3]); add1(A, OPACC[3]); tag(OPQ + 2); cvt(A, OPQ + 3, OPACC[3])
    if lf:
        tag(OPQ + 1); tag(OPQ + 3)
    A(f"buffer_store_dwordx4 {v(OPQ, 4)}, {v(aP4)}, {s(SW, 4)}, {s(sPL)} offen {lf}")
    add0(A, OPACC[4]); add1(A, OPACC[4]); cvt(A, OPQ + 4, OPACC[4]); tag(OPQ + 4)
    A(f"buffer_store_dword {v(OPQ + 4)}, {v(aP1)}, {s(SW, 4)}, {s(sPL)} offen {lf}")
    phase(A, "outproj")
    phase_fold(A)
    noown = A.newlabel("noown")

    def counters():
        for r in (sKM, sVM):
            A(f"s_add_u32 {s(r)}, {s(r)}, {32 * 2048}")
        for r in (sMRw, sMRr):
            A(f"s_add_u32 {s(r)}, {s(r)}, 16384")
        A(f"s_add_u32 {s(sStep)}, {s(sStep)}, 1")
        A(f"s_and_b32 {s(sT1)}, {s(sStep)}, 3")
        A(f"s_lshl_b32 {s(sT1)}, {s(sT1)}, 14")
        A(f"s_add_u32 {s(sML)}, {s(sMLb)}, {s(sT1)}")
        A(f"s_xor_b32 {s(sT1)}, {s(sT1)}, 32768")
        A(f"s_add_u32 {s(sMLp)}, {s(sMLb)}, {s(sT1)}")
        A(f"s_bfe_u32 {s(sTagV)}, {s(sStep)}, 0x10004")
        A(f"s_and_b32 {s(sT1)}, {s(sStep)}, 7")
        A(f"s_lshl_b32 {s(sT1)}, {s(sT1)}, 10")
        A(f"s_and_b32 {s(sT0)}, {s(sStep)}, 8")
        A(f"s_lshl_b32 {s(sT0)}, {s(sT0)}, 11")
        A(f"s_or_b32 {s(sT0)}, {s(sT0)}, {s(sT1)}")
        A(f"s_add_u32 {s(sVXw)}, {s(sVXbw)}, {s(sT0)}")
        A(f"s_add_u32 {s(sVXr)}, {s(sVXbr)}, {s(sT0)}")

    def h1_loads(B):
        for i in range(4):
            B(f"buffer_load_dwordx4 {v(H1 + 4 * i, 4)}, {v(aR1)}, {s(SW, 4)}, {s(sPL)} offen offset:{1024 * i} sc1")

    def h1_round(B, extra):
        tmp = [T2a, T2b, X + 8, X + 9]
        for i in range(4):
            B(f"s_waitcnt vmcnt({3 - i + extra})")
            B(f"v_bitop3_b32 {v(tmp[i])}, {v(H1 + 4 * i)}, {v(H1 + 4 * i + 2)}, {s(sTag)} bitop3:0x7e")
            if lf:
                B(f"v_bitop3_b32 {v(X + 11)}, {v(H1 + 4 * i + 1)}, {v(H1 + 4 * i + 3)}, {s(sTag)} bitop3:0x7e")
                B(f"v_or_b32 {v(tmp[i])}, {v(tmp[i])}, {v(X + 11)}")
            mf32(B, T, H1 + 4 * i, vSel, None if i == 0 else T)
        B(f"v_or3_b32 {v(tmp[0])}, {v(tmp[0])}, {v(tmp[1])}, {v(tmp[2])}")
        B(f"v_bitop3_b32 {v(tmp[0])}, {v(tmp[0])}, {v(tmp[3])}, 1 bitop3:0xa8")
        B(f"v_cmp_ne_u32 vcc, 0, {v(tmp[0])}")

    A(f"s_cmp_eq_u32 {s(sOwn)}, 0")
    A(f"s_cbranch_scc1 {noown}")
    counters()
    delay(A, D1)
    phase(A, "pre-h1")
    h1_loads(A)
    A(f"s_waitcnt vmcnt({8 if TRACE else 6})")
    vt_read(A)
    q_stage(A)
    if H1P:
        delay(A, H1P - 1)
        h1_loads(A)
    zero_acc(A)
    A(f"v_mov_b32 {v(X + 10)}, -1")
    h1_round(A, 4 if H1P else 0)
    sl, hok = slow.newlabel("h1"), A.newlabel("hok")
    A(f"s_cbranch_vccnz {sl}" if not NOWAIT else "s_nop 0")
    slow.label(sl)
    slow("s_mov_b64 exec, vcc")
    if not H1P:
        h1_loads(slow)
        delay(slow, PIPE)
    lp = slow.newlabel("h1p")
    slow.label(lp)
    count(slow, 3)
    h1_loads(slow)
    slow("s_mov_b64 exec, -1")
    h1_round(slow, 4)
    masked_retry(slow, lp)
    slow(f"s_branch {hok}")
    A.label(hok)
    phase(A, "h1 loads")
    add0(A, T)
    add1(A, T)
    cvt(A, T, T)
    A(f"v_min_u32 {v(T)}, -2, {v(T)}")
    A(f"buffer_store_dword {v(T)}, {v(aR2)}, {s(SW, 4)}, {s(sML)} offen {lf}")
    if not B5:
        A(f"buffer_store_dword {v(T)}, {v(aR2)}, {s(SW, 4)}, {s(sMRw)} offen sc1")
        if R2:
            A(f"buffer_store_dword {v(T)}, {v(aR2)}, {s(SW2, 4)}, {s(sMRw)} offen sc1")
    phase(A, "hop1")
    A("s_waitcnt lgkmcnt(0)")
    A("s_barrier")
    A(f"s_and_b32 {s(sTag)}, {s(sStep)}, 1")
    if B5:
        A("s_barrier")
        A(f"buffer_store_dword {v(T)}, {v(aR2)}, {s(SW, 4)}, {s(sMRw)} offen sc1")
        if R2:
            A(f"buffer_store_dword {v(T)}, {v(aR2)}, {s(SW2, 4)}, {s(sMRw)} offen sc1")
    A(f"buffer_store_dword {v(X + 10)}, {v(aR2)}, {s(SW, 4)}, {s(sMLp)} offen {lf}")
    A(f"s_waitcnt vmcnt({4 if R2 else 3})")
    A(f"s_branch {entry}")
    A.label(noown)
    A(f"s_waitcnt vmcnt({4 if TRACE else 2})")
    vt_read(A)
    q_stage(A)
    zero_acc(A)
    counters()
    A(f"s_and_b32 {s(sTag)}, {s(sStep)}, 1")
    A("s_waitcnt lgkmcnt(0)")
    A(f"s_cmp_ge_u32 {s(sWv)}, 2")
    A("s_barrier")
    A(f"s_cbranch_scc1 {top}")
    if B5:
        A("s_barrier")
    A(f"s_branch {entry}")
    A.lines += slow.lines
    A.uid = slow.uid
    A.label(done)
    publish_v(A)
    publish_k(A, KA)


def stamp(A, i):
    A(f"s_memtime {s(sTime + 2 * i, 2)}")
    A("s_waitcnt lgkmcnt(0)")


def body(A, fast=True, diag=False, hooks=None, first_wait=None, load_par=False):
    lf = "" if fast else "sc1"
    if diag:
        stamp(A, 0)
    A(f"s_load_dwordx2 {s(P_MEM0, 2)}, s[0:1], {L.K_MEM0}")
    A(f"s_load_dwordx2 {s(P_WQ, 2)}, s[0:1], {L.K_WQ}")
    A(f"s_load_dwordx4 {s(P_WK, 4)}, s[0:1], {L.K_WK}")
    A(f"s_load_dwordx2 {s(P_WO, 2)}, s[0:1], {L.K_WO}")
    A(f"s_load_dwordx2 {s(P_DBG, 2)}, s[0:1], {L.K_DBG}")
    A(f"s_load_dwordx2 {s(P_WS, 2)}, s[0:1], {L.K_WS}")
    A(f"v_lshrrev_b32 v1, 6, v0")
    A(f"v_readfirstlane_b32 {s(sWv)}, v1")
    A(f"s_mov_b32 {s(sSpin)}, 100000")
    A("s_waitcnt lgkmcnt(0)")
    srd(A, SW, P_WS, L.WS_BYTES)
    if load_par:
        A(f"s_load_dword {s(sPar)}, {s(P_WS, 2)}, {L.PAR}")
        A("s_waitcnt lgkmcnt(0)")
        A(f"s_and_b32 {s(sPar)}, {s(sPar)}, 8192")
    prologue(A, "sc1")
    persistent(A)
    step_bases(A)
    if first_wait:
        first_wait(A)
    A("s_waitcnt lgkmcnt(0)")
    A.c("first segment: keys by DMA, values straight into registers")
    for lds, sb in ((KTL, sKT0), (KTL + 4096, sKT1)):
        A(f"s_add_u32 m0, {s(sW1k)}, {lds}")
        A(f"buffer_load_dwordx4 {v(aW1)}, {s(SW, 4)}, {s(sb)} offen sc1 lds")
    A(f"buffer_load_dwordx4 {v(vVt, 4)}, {v(aW1)}, {s(SW, 4)}, {s(sVTo)} offen sc1")
    A(f"buffer_load_dwordx4 {v(vVt + 4, 4)}, {v(aW1)}, {s(SW, 4)}, {s(sVTp)} offen sc1")
    for r in (sKT0, sKT1, sVTo, sVTp):
        A(f"s_add_u32 {s(r)}, {s(r)}, {32 * 8192}")
    A("s_barrier")
    A.c("first step: the far half of the memory is already staged; hand it to the regular path")
    A(f"ds_read_b128 {v(X + 30, 4)}, {v(aR3)} offset:{MEM + 5120}")
    A(f"ds_read_b128 {v(X + 34, 4)}, {v(aR3)} offset:{MEM + 6144}")
    A(f"ds_read_b64 {v(X + 38, 2)}, {v(aR4)} offset:{MEM + 5120}")
    A("s_waitcnt vmcnt(0)")
    zero_acc(A)
    q_stage(A)
    A.c("wait until every workgroup of the chain has initialised its exchange lines")
    lp = A.newlabel("allinp")
    A(f"v_mov_b32 {v(T2b)}, 0")
    A.label(lp)
    A(f"global_load_dwordx4 {v(X, 4)}, {v(T2b)}, {s(P_DBG, 2)} offset:{L.D_RINIT} sc1")
    A("s_waitcnt vmcnt(0)")
    A(f"v_sad_u8 {v(T2a)}, {v(X)}, 0, 0")
    for i in range(1, 4):
        A(f"v_sad_u8 {v(T2a)}, {v(X + i)}, 0, {v(T2a)}")
    A(f"v_cmp_gt_u32 vcc, 64, {v(T2a)}")
    retry(A, lp)
    A.c("both groups on one die each: group-local data may stay in that die's L2")
    for i in range(4):
        A(f"v_and_b32 {v(X + i)}, 0x20202020, {v(X + i)}")
    A(f"v_or_b32 {v(X)}, {v(X)}, {v(X + 1)}")
    A(f"v_or_b32 {v(X + 2)}, {v(X + 2)}, {v(X + 3)}")
    A(f"v_min_u32 {v(X)}, {v(X)}, {v(X + 2)}")
    A(f"v_readfirstlane_b32 {s(sFast)}, {v(X)}")
    if diag:
        stamp(A, 1)
    if NOWAIT:
        A(f"s_mov_b32 {s(sSpin)}, 0")
    if CNT:
        for i in range(4):
            A(f"s_mov_b32 {s(98 + i)}, 0")
    if PH is not None:
        for i in range(73, 102):
            A(f"s_mov_b32 {s(i)}, {s(sTime + 2) if i < 92 else 0}")
    if fast is None:
        slowv, fin = A.newlabel("spread"), A.newlabel("fin")
        A(f"s_cmp_eq_u32 {s(sFast)}, 0")
        A(f"s_cbranch_scc1 {slowv}")
        step_loop(A, "", hooks)
        A(f"s_branch {fin}")
        A.label(slowv)
        step_loop(A, "sc1", hooks)
        A.label(fin)
    else:
        step_loop(A, lf, hooks)
    A("s_waitcnt vmcnt(0) lgkmcnt(0)")
    if diag:
        stamp(A, 2)
        A(f"s_lshl_b32 {s(sT0)}, {s(sX)}, 5")
        A(f"s_add_u32 {s(sT0)}, {s(sT0)}, {s(sH)}")
        A(f"s_lshl_b32 {s(sT0)}, {s(sT0)}, 2")
        A(f"s_add_u32 {s(sT0)}, {s(sT0)}, {s(sWv)}")
        A(f"s_lshl_b32 {s(sT0)}, {s(sT0)}, 5")
        A(f"s_add_u32 {s(sT0)}, {s(sT0)}, {L.STAMP}")
        A(f"s_getreg_b32 {s(sT1)}, hwreg(HW_REG_XCC_ID)")
        for i in range(3):
            A(f"v_mov_b32 {v(X + i)}, {s(sTime + 2 * i)}")
        A(f"v_mov_b32 {v(X + 3)}, {s(sSpin)}")
        A(f"v_mov_b32 {v(X + 4)}, {s(sT1)}")
        A(f"s_lshl_b32 s99, s99, 16")
        A(f"s_or_b32 s98, s98, s99")
        A(f"s_lshl_b32 s101, s101, 16")
        A(f"s_or_b32 s100, s100, s101")
        A(f"v_mov_b32 {v(X + 5)}, s98")
        A(f"v_mov_b32 {v(X + 6)}, s100")
        A(f"v_mov_b32 {v(T2b)}, 0")
        A(f"buffer_store_dwordx4 {v(X, 4)}, {v(T2b)}, {s(SW, 4)}, {s(sT0)} offen")
        A(f"buffer_store_dwordx4 {v(X + 4, 4)}, {v(T2b)}, {s(SW, 4)}, {s(sT0)} offen offset:16")
        if PH is not None:
            A(f"s_lshl_b32 {s(sT0)}, {s(sT0)}, 1")
            for i in range(16):
                A(f"v_mov_b32 {v(X + 8 + i)}, {s(sPh + min(i, 9))}")
            for i in range(4):
                A(f"buffer_store_dwordx4 {v(X + 8 + 4 * i, 4)}, {v(T2b)}, {s(SW, 4)}, {s(sT0)} offen offset:{16 * i}")
        A("s_waitcnt vmcnt(0)")


def standalone(par=0, fast=True, diag=False, xa=0):
    A = Asm()
    end = A.newlabel("end")
    A(f"s_cmp_ge_u32 s2, 256")
    A(f"s_cbranch_scc1 {end}")
    A(f"s_and_b32 {s(sX)}, s2, 7")
    A(f"s_sub_u32 {s(sX)}, {s(sX)}, {xa}")
    A(f"s_cmp_ge_u32 {s(sX)}, 2")
    A(f"s_cbranch_scc1 {end}")
    A(f"s_lshr_b32 {s(sH)}, s2, 3")
    if par is not None:
        A(f"s_mov_b32 {s(sPar)}, {8192 * par}")
    body(A, fast, diag, load_par=par is None)
    A.label(end)
    A("s_endpgm")
    return A
```

```python
from asmlib import Asm, v, a, s
import layout as L

SW = 4
SA = 8
SB = 12
SC = 16
P0, P1, P2, PWS = 20, 22, 24, 26
sWv, sRole, sSeg, sStep, sEnd = 28, 29, 30, 31, 32
sT0, sT1, sT2, sT3 = 33, 34, 35, 36
sK = 40
sC = 48
ST = "sc1"
LD = "sc1"


def srd(A, base, ptr, nbytes, off=0):
    if off:
        A(f"s_add_u32 {s(base)}, {s(ptr)}, {off}")
        A(f"s_addc_u32 {s(base + 1)}, {s(ptr + 1)}, 0")
        A(f"s_and_b32 {s(base + 1)}, {s(base + 1)}, 0xffff")
    else:
        A(f"s_mov_b32 {s(base)}, {s(ptr)}")
        A(f"s_and_b32 {s(base + 1)}, {s(ptr + 1)}, 0xffff")
    A(f"s_mov_b32 {s(base + 2)}, {nbytes}")
    A(f"s_mov_b32 {s(base + 3)}, 0x20000")


def common(A, ptrs):
    for dst, off in zip((P0, P1, P2), ptrs):
        A(f"s_load_dwordx2 {s(dst, 2)}, s[0:1], {off}")
    A(f"s_load_dwordx2 {s(PWS, 2)}, s[0:1], {L.K_WS}")
    A("v_lshrrev_b32 v1, 6, v0")
    A(f"v_readfirstlane_b32 {s(sWv)}, v1")
    A("s_waitcnt lgkmcnt(0)")
    srd(A, SW, PWS, L.WS_BYTES)


def rnd2(A, x, y, t):
    A(f"v_cvt_pk_bf16_f32 {v(t)}, {v(x)}, {v(y)}")
    A(f"v_lshlrev_b32 {v(x)}, 16, {v(t)}")
    A(f"v_and_b32 {v(y)}, 0xffff0000, {v(t)}")


def rnd1(A, x):
    A(f"v_cvt_pk_bf16_f32 {v(x)}, {v(x)}, {v(x)}")
    A(f"v_lshlrev_b32 {v(x)}, 16, {v(x)}")


def unpack(A, src, lo, hi):
    A(f"v_and_b32 {v(hi)}, 0xffff0000, {v(src)}")
    A(f"v_lshlrev_b32 {v(lo)}, 16, {v(src)}")


def wave_sum(A, x, t):
    for k in (1, 2, 4, 8):
        A(f"v_add_f32_dpp {v(x)}, {v(x)}, {v(x)} row_ror:{k} row_mask:0xf bank_mask:0xf")
    for op in ("v_permlane16_swap_b32", "v_permlane32_swap_b32"):
        A(f"v_mov_b32 {v(t)}, {v(x)}")
        A(f"{op} {v(x)}, {v(t)}")
        A(f"v_add_f32 {v(x)}, {v(x)}, {v(t)}")


def mod_role(A):
    W, C, ACC, t0, t1, t2, t3 = 16, 60, 72, 2, 3, 4, 5
    common(A, (L.K_C, L.K_WMOD))
    srd(A, SA, P0, 1280)
    srd(A, SB, P1, 640 * 7680)
    A(f"v_lshrrev_b32 {v(t0)}, 2, v0")
    A(f"v_mul_u32_u24 {v(t1)}, 20, {v(t0)}")
    for i in range(5):
        A(f"buffer_load_dword {v(C + 2 * i)}, {v(t1)}, {s(SA, 4)}, 0 offen offset:{4 * i}")
    A(f"v_mul_u32_u24 {v(t1)}, {10 * 7680}, {v(t0)}")
    A(f"v_and_b32 {v(t2)}, 3, v0")
    A(f"v_lshl_add_u32 {v(t1)}, {v(t2)}, 4, {v(t1)}")
    A(f"s_lshl_b32 {s(sT0)}, {s(sRole)}, 6")
    for i in range(10):
        A(f"buffer_load_dwordx4 {v(W + 4 * i, 4)}, {v(t1)}, {s(SB, 4)}, {s(sT0)} offen")
        A(f"s_add_u32 {s(sT0)}, {s(sT0)}, 7680")
    A("s_waitcnt vmcnt(10)")
    A(f"s_mov_b32 {s(sC)}, 0xbfb8aa3b")
    for i in range(5):
        unpack(A, C + 2 * i, C + 2 * i, C + 2 * i + 1)
    for i in range(10):
        A(f"v_mul_f32 {v(t2)}, {s(sC)}, {v(C + i)}")
        A(f"v_exp_f32 {v(t2)}, {v(t2)}")
        A(f"v_add_f32 {v(t2)}, 1.0, {v(t2)}")
        A(f"v_rcp_f32 {v(t2)}, {v(t2)}")
        A(f"v_mul_f32 {v(C + i)}, {v(C + i)}, {v(t2)}")
        rnd1(A, C + i)
    for i in range(10):
        A(f"s_waitcnt vmcnt({9 - i})")
        for d in range(4):
            unpack(A, W + 4 * i + d, t2, t3)
            if i == 0:
                A(f"v_mul_f32 {v(ACC + 2 * d)}, {v(C)}, {v(t2)}")
                A(f"v_mul_f32 {v(ACC + 2 * d + 1)}, {v(C)}, {v(t3)}")
            else:
                A(f"v_fmac_f32 {v(ACC + 2 * d)}, {v(C + i)}, {v(t2)}")
                A(f"v_fmac_f32 {v(ACC + 2 * d + 1)}, {v(C + i)}, {v(t3)}")
    for k in (4, 8):
        for j in range(8):
            A(f"v_add_f32_dpp {v(ACC + j)}, {v(ACC + j)}, {v(ACC + j)} row_ror:{k} row_mask:0xf bank_mask:0xf")
    for op in ("v_permlane16_swap_b32", "v_permlane32_swap_b32"):
        for j in range(8):
            A(f"v_mov_b32 {v(W + j)}, {v(ACC + j)}")
        for j in range(8):
            A(f"{op} {v(ACC + j)}, {v(W + j)}")
        for j in range(8):
            A(f"v_add_f32 {v(ACC + j)}, {v(ACC + j)}, {v(W + j)}")
    A(f"v_and_b32 {v(t2)}, 3, v0")
    A(f"v_lshlrev_b32 {v(t2)}, 5, {v(t2)}")
    A(f"s_lshl_b32 {s(sT0)}, {s(sWv)}, 7")
    A(f"v_add_u32 {v(t2)}, {s(sT0)}, {v(t2)}")
    A(f"ds_write_b128 {v(t2)}, {v(ACC, 4)}")
    A(f"ds_write_b128 {v(t2)}, {v(ACC + 4, 4)} offset:16")
    A("s_waitcnt lgkmcnt(0)")
    A("s_barrier")
    A(f"v_and_b32 {v(t2)}, 31, v0")
    A(f"v_lshlrev_b32 {v(t2)}, 2, {v(t2)}")
    for i in range(4):
        A(f"ds_read_b32 {v(W + i)}, {v(t2)} offset:{128 * i}")
    A("s_waitcnt lgkmcnt(0)")
    A(f"v_add_f32 {v(W)}, {v(W)}, {v(W + 1)}")
    A(f"v_add_f32 {v(W + 2)}, {v(W + 2)}, {v(W + 3)}")
    A(f"v_add_f32 {v(W)}, {v(W)}, {v(W + 2)}")
    rnd1(A, W)
    A(f"s_lshl_b32 {s(sT0)}, {s(sRole)}, 7")
    A(f"s_add_u32 {s(sT0)}, {s(sT0)}, {L.MOD}")
    skip = A.newlabel("modst")
    A(f"s_cmp_lg_u32 {s(sWv)}, 0")
    A(f"s_cbranch_scc1 {skip}")
    A(f"buffer_store_dword {v(W)}, {v(t2)}, {s(SW, 4)}, {s(sT0)} offen {ST}")
    A.label(skip)


class Row:
    l, o16, o8, o4, f0, f2, t0, t1, t2 = 1, 2, 3, 4, 5, 6, 7, 8, 9

    @staticmethod
    def setup(A):
        R = Row
        A(f"v_and_b32 {v(R.l)}, 63, v0")
        A(f"v_lshlrev_b32 {v(R.o16)}, 4, {v(R.l)}")
        A(f"v_lshlrev_b32 {v(R.o8)}, 3, {v(R.l)}")
        A(f"v_lshlrev_b32 {v(R.o4)}, 2, {v(R.l)}")
        for dst, sh in ((R.f0, 0), (R.f2, 1)):
            A(f"v_lshrrev_b32 {v(R.t0)}, {2 + sh}, {v(R.l)}")
            A(f"v_lshlrev_b32 {v(dst)}, 10, {v(R.t0)}")
            A(f"v_bfe_u32 {v(R.t0)}, {v(R.l)}, {sh}, 1")
            A(f"v_lshl_add_u32 {v(dst)}, {v(R.t0)}, 9, {v(dst)}")
            A(f"v_bfe_u32 {v(R.t0)}, {v(R.l)}, {sh + 1}, 1")
            A(f"v_lshl_add_u32 {v(dst)}, {v(R.t0)}, 3, {v(dst)}")
        A(f"v_and_b32 {v(R.t0)}, 1, {v(R.l)}")
        A(f"v_lshl_add_u32 {v(R.f2)}, {v(R.t0)}, 2, {v(R.f2)}")
        A(f"s_mov_b32 {s(sC)}, 0x3acccccd")
        A(f"s_mov_b32 {s(sC + 1)}, 0x3727c5ac")

    @staticmethod
    def load_bf16(A, dst, sd, so, pol=""):
        R = Row
        A(f"buffer_load_dwordx2 {v(dst, 2)}, {v(R.o8)}, {s(sd, 4)}, {s(so)} offen {pol}")
        A(f"buffer_load_dwordx2 {v(dst + 2, 2)}, {v(R.o8)}, {s(sd, 4)}, {s(so)} offen offset:512 {pol}")
        A(f"buffer_load_dword {v(dst + 4)}, {v(R.o4)}, {s(sd, 4)}, {s(so)} offen offset:1024 {pol}")

    @staticmethod
    def store_bf16(A, src, so):
        R = Row
        A(f"buffer_store_dwordx2 {v(src, 2)}, {v(R.o8)}, {s(SW, 4)}, {s(so)} offen {ST}")
        A(f"buffer_store_dwordx2 {v(src + 2, 2)}, {v(R.o8)}, {s(SW, 4)}, {s(so)} offen offset:512 {ST}")
        A(f"buffer_store_dword {v(src + 4)}, {v(R.o4)}, {s(SW, 4)}, {s(so)} offen offset:1024 {ST}")

    @staticmethod
    def load_f32(A, dst, so):
        R = Row
        A(f"buffer_load_dwordx4 {v(dst, 4)}, {v(R.o16)}, {s(SW, 4)}, {s(so)} offen {LD}")
        A(f"buffer_load_dwordx4 {v(dst + 4, 4)}, {v(R.o16)}, {s(SW, 4)}, {s(so)} offen offset:1024 {LD}")
        A(f"buffer_load_dwordx2 {v(dst + 8, 2)}, {v(R.o8)}, {s(SW, 4)}, {s(so)} offen offset:2048 {LD}")

    @staticmethod
    def store_f(A, src, base, srow):
        R = Row
        A(f"s_lshr_b32 {s(sT0)}, {s(srow)}, 5")
        A(f"s_mul_i32 {s(sT0)}, {s(sT0)}, 40960")
        A(f"s_and_b32 {s(sT1)}, {s(srow)}, 31")
        A(f"s_lshl_b32 {s(sT1)}, {s(sT1)}, 4")
        A(f"s_add_u32 {s(sT0)}, {s(sT0)}, {s(sT1)}")
        A(f"s_add_u32 {s(sT0)}, {s(sT0)}, {base}")
        A(f"buffer_store_dwordx2 {v(src, 2)}, {v(R.f0)}, {s(SW, 4)}, {s(sT0)} offen {ST}")
        A(f"s_add_u32 {s(sT0)}, {s(sT0)}, 16384")
        A(f"buffer_store_dwordx2 {v(src + 2, 2)}, {v(R.f0)}, {s(SW, 4)}, {s(sT0)} offen {ST}")
        A(f"s_add_u32 {s(sT0)}, {s(sT0)}, 16384")
        A(f"buffer_store_dword {v(src + 4)}, {v(R.f2)}, {s(SW, 4)}, {s(sT0)} offen {ST}")

    @staticmethod
    def unpack(A, src, dst):
        for i in range(5):
            unpack(A, src + i, dst + 2 * i, dst + 2 * i + 1)

    @staticmethod
    def round(A, x, pk):
        for i in range(5):
            rnd2(A, x + 2 * i, x + 2 * i + 1, pk + i)

    @staticmethod
    def pack(A, x, pk):
        for i in range(5):
            A(f"v_cvt_pk_bf16_f32 {v(pk + i)}, {v(x + 2 * i)}, {v(x + 2 * i + 1)}")

    @staticmethod
    def norm(A, x, d, pk):
        R = Row
        m, q, t = R.t0, R.t1, R.t2
        A(f"v_add_f32 {v(m)}, {v(x)}, {v(x + 1)}")
        A(f"v_add_f32 {v(q)}, {v(x + 2)}, {v(x + 3)}")
        for i in range(4, 10, 2):
            A(f"v_add_f32 {v(m)}, {v(m)}, {v(x + i)}")
            A(f"v_add_f32 {v(q)}, {v(q)}, {v(x + i + 1)}")
        A(f"v_add_f32 {v(m)}, {v(m)}, {v(q)}")
        wave_sum(A, m, t)
        A(f"v_mul_f32 {v(m)}, {s(sC)}, {v(m)}")
        for i in range(10):
            A(f"v_sub_f32 {v(d + i)}, {v(x + i)}, {v(m)}")
        A(f"v_mul_f32 {v(q)}, {v(d)}, {v(d)}")
        for i in range(1, 10):
            A(f"v_fmac_f32 {v(q)}, {v(d + i)}, {v(d + i)}")
        rnd1(A, m)
        wave_sum(A, q, t)
        for i in range(10):
            A(f"v_sub_f32 {v(d + i)}, {v(x + i)}, {v(m)}")
        A(f"v_mul_f32 {v(q)}, {s(sC)}, {v(q)}")
        rnd1(A, q)
        A(f"v_add_f32 {v(q)}, {s(sC + 1)}, {v(q)}")
        rnd1(A, q)
        A(f"v_sqrt_f32 {v(q)}, {v(q)}")
        R.round(A, d, pk)
        rnd1(A, q)
        A(f"v_rcp_f32 {v(q)}, {v(q)}")
        for i in range(10):
            A(f"v_mul_f32 {v(d + i)}, {v(d + i)}, {v(q)}")

    @staticmethod
    def modulate(A, d, sc, sh, pk):
        R = Row
        R.round(A, d, pk)
        for i in range(10):
            A(f"v_mul_f32 {v(d + i)}, {v(d + i)}, {v(sc + i)}")
        R.round(A, d, pk)
        for i in range(10):
            A(f"v_add_f32 {v(d + i)}, {v(d + i)}, {v(sh + i)}")

    @staticmethod
    def load_mod(A, dst, chunk):
        A(f"s_mov_b32 {s(sT0)}, {L.MOD + chunk * 2560}")
        Row.load_f32(A, dst, sT0)

    @staticmethod
    def one_plus(A, x, pk):
        for i in range(10):
            A(f"v_add_f32 {v(x + i)}, 1.0, {v(x + i)}")
        Row.round(A, x, pk)


def row_loop(A, body):
    top, end = A.newlabel("row"), A.newlabel("rowend")
    A(f"s_cmp_ge_u32 {s(sSeg)}, {s(sEnd)}")
    A(f"s_cbranch_scc1 {end}")
    A.label(top)
    body()
    A(f"s_add_u32 {s(sSeg)}, {s(sSeg)}, {s(sStep)}")
    A(f"s_cmp_lt_u32 {s(sSeg)}, {s(sEnd)}")
    A(f"s_cbranch_scc1 {top}")
    A.label(end)


def ln1_role(A):
    X, D, PK, SC, SH, IN = 10, 20, 30, 36, 46, 56
    common(A, (L.K_X,))
    A(f"s_add_u32 {s(sSeg)}, {s(sSeg)}, {s(sWv)}")
    srd(A, SA, P0, 2048 * 1280)
    Row.setup(A)
    Row.load_mod(A, SH, 0)
    Row.load_mod(A, SC, 1)
    A("s_waitcnt vmcnt(0)")
    Row.one_plus(A, SC, PK)

    def body():
        A(f"s_mul_i32 {s(sT2)}, {s(sSeg)}, 1280")
        Row.load_bf16(A, IN, SA, sT2)
        A("s_waitcnt vmcnt(0)")
        Row.unpack(A, IN, X)
        Row.norm(A, X, D, PK)
        Row.modulate(A, D, SC, SH, PK)
        Row.pack(A, D, PK)
        Row.store_f(A, PK, L.H, sSeg)
    row_loop(A, body)


def ln23_role(A):
    X, D, PK, SC, SH, GA, IN, P = 10, 20, 30, 36, 46, 56, 66, 72
    common(A, (L.K_X,))
    A(f"s_add_u32 {s(sSeg)}, {s(sSeg)}, {s(sWv)}")
    srd(A, SA, P0, 2048 * 1280)
    Row.setup(A)
    Row.load_mod(A, GA, 2)
    Row.load_mod(A, SH, 3)
    Row.load_mod(A, SC, 4)
    A("s_waitcnt vmcnt(0)")
    Row.one_plus(A, SC, PK)

    def body():
        A(f"s_mul_i32 {s(sT2)}, {s(sSeg)}, 1280")
        Row.load_bf16(A, IN, SA, sT2)
        A(f"s_lshl_b32 {s(sT3)}, {s(sT2)}, 1")
        A(f"s_add_u32 {s(sT3)}, {s(sT3)}, {L.PO}")
        for k in range(4):
            Row.load_f32(A, P + 10 * k, sT3)
            A(f"s_add_u32 {s(sT3)}, {s(sT3)}, {2048 * 2560}")
        A("s_waitcnt vmcnt(6)")
        Row.unpack(A, IN, X)
        for i in range(10):
            A(f"v_add_f32 {v(P + i)}, {v(P + i)}, {v(P + 10 + i)}")
        A("s_waitcnt vmcnt(0)")
        for i in range(10):
            A(f"v_add_f32 {v(P + 20 + i)}, {v(P + 20 + i)}, {v(P + 30 + i)}")
        for i in range(10):
            A(f"v_add_f32 {v(D + i)}, {v(P + i)}, {v(P + 20 + i)}")
        Row.round(A, D, PK)
        for i in range(10):
            A(f"v_mul_f32 {v(D + i)}, {v(D + i)}, {v(GA + i)}")
        Row.round(A, D, PK)
        for i in range(10):
            A(f"v_add_f32 {v(X + i)}, {v(X + i)}, {v(D + i)}")
        Row.round(A, X, IN)
        A(f"s_add_u32 {s(sT3)}, {s(sT2)}, {L.X2}")
        Row.store_bf16(A, IN, sT3)
        Row.norm(A, X, D, PK)
        Row.modulate(A, D, SC, SH, PK)
        Row.round(A, D, P)
        A(f"s_add_u32 {s(sT3)}, {s(sT2)}, {L.H2}")
        Row.store_bf16(A, P, sT3)
        Row.norm(A, D, X, PK)
        Row.pack(A, X, PK)
        Row.store_f(A, PK, L.T3, sSeg)
    row_loop(A, body)


def ln4_role(A):
    X, D, PK, IN = 10, 20, 30, 36
    common(A, ())
    A(f"s_add_u32 {s(sSeg)}, {s(sSeg)}, {s(sWv)}")
    Row.setup(A)

    def body():
        A(f"s_mul_i32 {s(sT2)}, {s(sSeg)}, 1280")
        A(f"s_add_u32 {s(sT2)}, {s(sT2)}, {L.X1}")
        Row.load_bf16(A, IN, SW, sT2, LD)
        A("s_waitcnt vmcnt(0)")
        Row.unpack(A, IN, X)
        Row.norm(A, X, D, PK)
        Row.pack(A, D, PK)
        Row.store_f(A, PK, L.T4, sSeg)
    row_loop(A, body)


def mf32(A, d, x, y, c):
    A(f"v_mfma_f32_32x32x16_bf16 {d}, {x}, {y}, {c}")


def qkv_role(A, wait_h=None, done=None):
    l, n, g, t0, t1, t2, lin, oa = 1, 2, 3, 4, 5, 6, 7, 8
    ACC, PK, HB = 16, 32, 40
    sMat, sMb, sSrc, sOut, sBuf, sNxt = 56, 57, 58, 59, 60, 61
    common(A, (L.K_WQ, L.K_WK, L.K_WV))
    A(f"s_lshr_b32 {s(sMat)}, {s(sRole)}, 5")
    A(f"s_cmp_eq_u32 {s(sMat)}, 1")
    A(f"s_cselect_b64 {s(P0, 2)}, {s(P1, 2)}, {s(P0, 2)}")
    A(f"s_cmp_eq_u32 {s(sMat)}, 2")
    A(f"s_cselect_b64 {s(P0, 2)}, {s(P2, 2)}, {s(P0, 2)}")
    srd(A, SA, P0, 640 * 8192)
    A(f"v_and_b32 {v(l)}, 63, v0")
    A(f"v_and_b32 {v(n)}, 15, v0")
    A(f"v_bfe_u32 {v(g)}, v0, 4, 2")
    A(f"v_lshlrev_b32 {v(lin)}, 4, {v(l)}")
    A.c("weights: piece 4i+w = rows 16i+4w..+3, 16-byte unit n xor 4*(row&3)")
    A(f"v_lshlrev_b32 {v(t0)}, 2, {v(g)}")
    A(f"v_xor_b32 {v(t0)}, {v(t0)}, {v(n)}")
    A(f"v_lshlrev_b32 {v(t0)}, 4, {v(t0)}")
    A(f"v_lshl_add_u32 {v(t0)}, {v(g)}, 13, {v(t0)}")
    A(f"s_and_b32 {s(sT0)}, {s(sRole)}, 31")
    A(f"s_lshl_b32 {s(sOut)}, {s(sT0)}, 13")
    A(f"s_lshl_b32 {s(sT0)}, {s(sT0)}, 8")
    A(f"s_lshl_b32 {s(sT1)}, {s(sWv)}, 15")
    A(f"s_add_u32 {s(sSrc)}, {s(sT0)}, {s(sT1)}")
    A(f"s_lshl_b32 {s(sMb)}, {s(sWv)}, 10")
    for i in range(40):
        A(f"s_add_u32 m0, {s(sMb)}, {4096 * i}")
        A(f"buffer_load_dwordx4 {v(t0)}, {s(SA, 4)}, {s(sSrc)} offen lds")
        A(f"s_add_u32 {s(sSrc)}, {s(sSrc)}, {16 * 8192}")
    A.c("transpose reads: row 4hi+rho, unit 4(w^rho) + 2(G&1) + (cc>>1)")
    A(f"v_lshrrev_b32 {v(t0)}, 2, {v(n)}")
    A(f"v_xor_b32 {v(t1)}, {s(sWv)}, {v(t0)}")
    A(f"v_lshlrev_b32 {v(t1)}, 6, {v(t1)}")
    A(f"v_lshl_add_u32 {v(t1)}, {v(t0)}, 8, {v(t1)}")
    A(f"v_lshrrev_b32 {v(t0)}, 1, {v(g)}")
    A(f"v_lshl_add_u32 {v(t1)}, {v(t0)}, 10, {v(t1)}")
    A(f"v_and_b32 {v(t0)}, 1, {v(g)}")
    A(f"v_lshl_add_u32 {v(t1)}, {v(t0)}, 5, {v(t1)}")
    A(f"v_and_b32 {v(t0)}, 3, {v(n)}")
    A(f"v_lshl_add_u32 {v(t1)}, {v(t0)}, 3, {v(t1)}")
    A.c("output offset: (G&1)*1024 + hi*256 + n*16 + w*2048")
    A(f"v_and_b32 {v(t0)}, 1, {v(g)}")
    A(f"v_lshlrev_b32 {v(oa)}, 10, {v(t0)}")
    A(f"v_lshrrev_b32 {v(t0)}, 1, {v(g)}")
    A(f"v_lshl_add_u32 {v(oa)}, {v(t0)}, 8, {v(oa)}")
    A(f"v_lshl_add_u32 {v(oa)}, {v(n)}, 4, {v(oa)}")
    A(f"s_lshl_b32 {s(sT0)}, {s(sWv)}, 11")
    A(f"v_add_u32 {v(oa)}, {s(sT0)}, {v(oa)}")
    A(f"s_lshl_b32 {s(sT0)}, {s(sMat)}, 24")
    A(f"s_add_u32 {s(sOut)}, {s(sOut)}, {s(sT0)}")
    A(f"s_add_u32 {s(sOut)}, {s(sOut)}, {L.QT}")
    assert L.KT - L.QT == 1 << 24 and L.VT - L.KT == 1 << 24
    for c in range(4):
        A(f"s_waitcnt vmcnt({30 - 10 * c})")
        A("s_barrier")
        for ks in range(10 * c, 10 * c + 10):
            for jj in range(2):
                A(f"ds_read_b64_tr_b16 {a(4 * ks + 2 * jj, 2)}, {v(t1)} offset:{(ks - 10 * c) * 4096 + jj * 2048}")
        if c < 3:
            A(f"v_add_u32 {v(t1)}, 40960, {v(t1)}")
    A("s_waitcnt lgkmcnt(0)")
    A("s_barrier")

    def dma_piece(i):
        A(f"buffer_load_dwordx4 {v(lin)}, {s(SW, 4)}, {s(sT0)} offen {LD} lds")
        A(f"s_add_u32 {s(sT0)}, {s(sT0)}, 4096")

    def dma(sseg, sbuf, now=True):
        A(f"s_min_u32 {s(sT0)}, {s(sseg)}, 63")
        A(f"s_mul_i32 {s(sT0)}, {s(sT0)}, 40960")
        A(f"s_add_u32 {s(sT0)}, {s(sT0)}, {L.H}")
        A(f"s_add_u32 {s(sT0)}, {s(sT0)}, {s(sMb)}")
        A(f"s_add_u32 {s(sT1)}, {s(sbuf)}, {s(sMb)}")
        for i in range(10 if now else 0):
            A(f"s_add_u32 m0, {s(sT1)}, {4096 * i}")
            dma_piece(i)

    if wait_h:
        wait_h(A)
    A(f"s_mov_b32 {s(sBuf)}, 0")
    dma(sSeg, sBuf)
    A(f"s_add_u32 {s(sNxt)}, {s(sSeg)}, {s(sStep)}")
    A(f"s_mov_b32 {s(sT2)}, 40960")
    dma(sNxt, sT2)
    A("s_waitcnt vmcnt(10)")
    isv, end = A.newlabel("qkv_v"), A.newlabel("qkv_end")
    A(f"s_cmp_eq_u32 {s(sMat)}, 2")
    A(f"s_cbranch_scc1 {isv}")
    for vmode in (0, 1):
        if vmode:
            A.label(isv)
        top = A.newlabel("qkv")
        A.label(top)
        A("s_barrier")
        A(f"s_add_u32 {s(sNxt)}, {s(sNxt)}, {s(sStep)}")
        A(f"s_add_u32 {s(sT2)}, {s(sBuf)}, 81920")
        A(f"s_cmp_ge_u32 {s(sT2)}, 122880")
        A(f"s_cselect_b32 {s(sT3)}, 122880, 0")
        A(f"s_sub_u32 {s(sT2)}, {s(sT2)}, {s(sT3)}")
        dma(sNxt, sT2, False)
        A(f"v_add_u32 {v(t0)}, {s(sBuf)}, {v(lin)}")
        NP = 4
        for ks in range(NP):
            A(f"ds_read_b128 {v(HB + 4 * ks, 4)}, {v(t0)} offset:{1024 * ks}")
        for ks in range(40):
            A(f"s_waitcnt lgkmcnt({min(NP - 1, 39 - ks)})")
            hb = v(HB + 4 * (ks % (NP + 1)), 4)
            c = "0" if ks == 0 else v(ACC, 16)
            if vmode:
                mf32(A, v(ACC, 16), hb, a(4 * ks, 4), c)
            else:
                mf32(A, v(ACC, 16), a(4 * ks, 4), hb, c)
            if ks % 4 == 0:
                A(f"s_add_u32 m0, {s(sT1)}, {1024 * ks}")
            if ks % 4 == 1:
                dma_piece(ks >> 2)
            if ks + NP < 40:
                A(f"ds_read_b128 {v(HB + 4 * ((ks + NP) % (NP + 1)), 4)}, {v(t0)} offset:{1024 * (ks + NP)}")
        A(f"s_lshl_b32 {s(sT0)}, {s(sSeg)}, 18")
        A(f"s_add_u32 {s(sT0)}, {s(sT0)}, {s(sOut)}")
        A(f"s_add_u32 {s(sBuf)}, {s(sBuf)}, 40960")
        A(f"s_cmp_ge_u32 {s(sBuf)}, 122880")
        A(f"s_cselect_b32 {s(sBuf)}, 0, {s(sBuf)}")
        for b in range(2):
            src = [4 * b, 4 * b + 2, 8 + 4 * b, 10 + 4 * b] if vmode else [8 * b + 2 * i for i in range(4)]
            for i in range(4):
                A(f"v_cvt_pk_bf16_f32 {v(PK + 4 * b + i)}, {v(ACC + src[i])}, {v(ACC + src[i] + 1)}")
        for b in range(2):
            A(f"buffer_store_dwordx4 {v(PK + 4 * b, 4)}, {v(oa)}, {s(SW, 4)}, {s(sT0)} offen offset:{512 * b} {ST}")
        if done:
            done(A)
        A(f"s_add_u32 {s(sSeg)}, {s(sSeg)}, {s(sStep)}")
        A("s_waitcnt vmcnt(12)")
        A(f"s_cmp_lt_u32 {s(sSeg)}, {s(sEnd)}")
        A(f"s_cbranch_scc1 {top}")
        if not vmode:
            A(f"s_branch {end}")
    A.label(end)
    A("s_waitcnt vmcnt(0)")


GEMMS = {
    "op": (L.K_WO, 4096, 1280, 16, L.O, 256, "part"),
    "m1": (L.K_W1, 640, 1280, 10, L.T3, 40, "gelu"),
    "m2": (L.K_W2, 640, 1280, 10, L.U1, 40, "res1"),
    "m3": (L.K_W3, 640, 3456, 10, L.T4, 40, "gelu"),
    "m4": (L.K_W4, 1728, 1280, 27, L.U2, 108, "final"),
}
PS, TS, WSZ, BSZ = 544, 4352, 8704, 34816


def gelu(A, x, t):
    A(f"v_mul_f32 {v(t)}, {v(x)}, {v(x)}")
    A(f"v_fma_f32 {v(t)}, {v(t)}, {s(sC + 1)}, {v(2)}")
    A(f"v_mul_f32 {v(t)}, {v(t)}, {v(x)}")
    A(f"v_exp_f32 {v(t)}, {v(t)}")
    A(f"v_add_f32 {v(t)}, 1.0, {v(t)}")
    A(f"v_rcp_f32 {v(t)}, {v(t)}")
    A(f"v_mul_f32 {v(x)}, {v(x)}, {v(t)}")


def gemm_role(A, name, wait=None, done=None):
    wptr, wrows, wstride, KSW, abase, aks, epi = GEMMS[name]
    astride = aks * 1024
    l, c1, g, t0, t1, t2, aA, aW, aR, aO, aE = 1, 2, 3, 4, 5, 6, 7, 8, 9, 10, 11
    ACC, RD, EL, GB, AF = 12, 44, 76, 84, 92
    sNb, sKq, sSrc, sMb, sBuf, sO, sE = 56, 57, 58, 59, 60, 61, 62
    common(A, (wptr, L.K_OUT))
    if name == "op":
        A(f"s_mul_hi_u32 {s(sKq)}, {s(sRole)}, 0x1999999a")
        A(f"s_mul_i32 {s(sT0)}, {s(sKq)}, 10")
        A(f"s_sub_u32 {s(sNb)}, {s(sRole)}, {s(sT0)}")
    else:
        A(f"s_mov_b32 {s(sKq)}, 0")
        A(f"s_mov_b32 {s(sNb)}, {s(sRole)}")
    srd(A, SA, PWS, 64 * astride, abase)
    srd(A, SB, P0, wrows * wstride)
    srd(A, SC, P1, 2048 * 1280)
    for i in range(7):
        A(f"s_mov_b32 {s(sK + i)}, {4096 * i}")
    A(f"v_and_b32 {v(l)}, 63, v0")
    A(f"v_bfe_u32 {v(g)}, v0, 4, 2")
    A.c("weight rows of this wave, 8 rows per piece, 16-byte unit xor 4*((row>>1)&1)")
    A(f"v_and_b32 {v(t0)}, 1, {v(g)}")
    A(f"v_lshlrev_b32 {v(t0)}, 2, {v(t0)}")
    A(f"v_and_b32 {v(t1)}, 7, {v(l)}")
    A(f"v_xor_b32 {v(t0)}, {v(t0)}, {v(t1)}")
    A(f"v_lshrrev_b32 {v(t1)}, 3, {v(l)}")
    A(f"v_mul_u32_u24 {v(t1)}, {wstride}, {v(t1)}")
    A(f"v_lshl_add_u32 {v(aW)}, {v(t0)}, 4, {v(t1)}")
    A(f"s_lshl_b32 {s(sT0)}, {s(sKq)}, 2")
    A(f"s_add_u32 {s(sT0)}, {s(sT0)}, {s(sWv)}")
    A(f"s_mul_i32 {s(sT2)}, {s(sT0)}, {KSW * 1024}")
    A(f"s_mul_i32 {s(sSrc)}, {s(sT0)}, {16 * KSW * wstride}")
    A(f"s_lshl_b32 {s(sT1)}, {s(sNb)}, 7")
    A(f"s_add_u32 {s(sSrc)}, {s(sSrc)}, {s(sT1)}")
    A(f"s_mul_i32 {s(sMb)}, {s(sWv)}, 40960")
    rounds = [(0, KSW)] if KSW <= 20 else [(0, 14), (14, KSW)]

    def issue(k0, k1):
        for i in range(2 * (k1 - k0)):
            A(f"s_add_u32 m0, {s(sMb)}, {1024 * i}")
            A(f"buffer_load_dwordx4 {v(aW)}, {s(SB, 4)}, {s(sSrc)} offen lds")
            A(f"s_add_u32 {s(sSrc)}, {s(sSrc)}, {8 * wstride}")

    issue(*rounds[0])
    A.c("activation offsets")
    A(f"v_and_b32 {v(t0)}, 31, {v(l)}")
    if name == "m2":
        A(f"s_lshr_b32 {s(sT0)}, {s(sWv)}, 1")
        A(f"s_add_u32 {s(sT0)}, {s(sT0)}, 1")
        A(f"s_sub_u32 {s(sT1)}, 0, {s(sT0)}")
        A(f"s_bitcmp1_b32 {s(sWv)}, 0")
        A(f"s_cselect_b32 {s(sT0)}, {s(sT0)}, {s(sT1)}")
        A(f"v_add_u32 {v(t0)}, {s(sT0)}, {v(t0)}")
        A(f"v_ashrrev_i32 {v(t1)}, 5, {v(t0)}")
        A(f"v_mul_i32_i24 {v(t1)}, {astride}, {v(t1)}")
        A(f"v_and_b32 {v(t0)}, 31, {v(t0)}")
        A(f"v_lshl_add_u32 {v(aA)}, {v(t0)}, 4, {v(t1)}")
        A(f"v_lshrrev_b32 {v(t0)}, 5, {v(l)}")
        A(f"v_lshl_add_u32 {v(aA)}, {v(t0)}, 9, {v(aA)}")
    else:
        A(f"v_lshlrev_b32 {v(aA)}, 4, {v(l)}")
    A(f"s_mul_i32 {s(sT0)}, {s(sSeg)}, {astride}")
    A(f"s_add_u32 {s(sT0)}, {s(sT0)}, {s(sT2)}")
    A(f"v_add_u32 {v(aA)}, {s(sT0)}, {v(aA)}")
    A.c("transpose-read address: row 4hi+rho, unit (2(G&1) + (cc>>1)) xor 4(rho>>1)")
    A(f"v_bfe_u32 {v(t0)}, {v(l)}, 2, 2")
    A(f"v_lshlrev_b32 {v(t1)}, 7, {v(t0)}")
    A(f"v_lshrrev_b32 {v(t0)}, 1, {v(t0)}")
    A(f"v_lshl_add_u32 {v(t1)}, {v(t0)}, 6, {v(t1)}")
    A(f"v_lshrrev_b32 {v(t0)}, 1, {v(g)}")
    A(f"v_lshl_add_u32 {v(t1)}, {v(t0)}, 9, {v(t1)}")
    A(f"v_and_b32 {v(t0)}, 1, {v(g)}")
    A(f"v_lshl_add_u32 {v(t1)}, {v(t0)}, 5, {v(t1)}")
    A(f"v_and_b32 {v(t0)}, 3, {v(l)}")
    A(f"v_lshl_add_u32 {v(t1)}, {v(t0)}, 3, {v(t1)}")
    A(f"v_xor_b32 {v(t2)}, 64, {v(t1)}")
    A(f"v_add_u32 {v(t1)}, {s(sMb)}, {v(t1)}")
    A(f"v_add_u32 {v(t2)}, {s(sMb)}, {v(t2)}")
    for ri, (k0, k1) in enumerate(rounds):
        if ri:
            A("s_waitcnt lgkmcnt(0)")
            issue(k0, k1)
        for ks in range(k0, k1):
            if (ks - k0) % 2 == 0:
                A(f"s_waitcnt vmcnt({max(0, 2 * (k1 - ks) - 4)})")
            for T in range(2):
                for jj in range(2):
                    A(f"ds_read_b64_tr_b16 {a(8 * ks + 4 * T + 2 * jj, 2)}, {v(t2 if T else t1)} offset:{(ks - k0) * 2048 + jj * 1024}")
    A.c("reduction and output addresses")
    A(f"v_lshrrev_b32 {v(t0)}, 5, {v(l)}")
    A(f"v_mul_u32_u24 {v(t0)}, {PS}, {v(t0)}")
    A(f"v_and_b32 {v(t1)}, 31, {v(l)}")
    A(f"v_lshl_add_u32 {v(t0)}, {v(t1)}, 4, {v(t0)}")
    A(f"s_mul_i32 {s(sT0)}, {s(sWv)}, {WSZ}")
    A(f"v_add_u32 {v(aW)}, {s(sT0)}, {v(t0)}")
    if epi == "gelu":
        A(f"s_lshr_b32 {s(sT0)}, {s(sWv)}, 1")
        A(f"s_mul_i32 {s(sT0)}, {s(sT0)}, {TS}")
        A(f"s_and_b32 {s(sT1)}, {s(sWv)}, 1")
        A(f"s_mul_i32 {s(sT1)}, {s(sT1)}, {4 * PS}")
        A(f"s_add_u32 {s(sT0)}, {s(sT0)}, {s(sT1)}")
        A(f"v_add_u32 {v(aR)}, {s(sT0)}, {v(t0)}")
        A(f"s_lshl_b32 {s(sT0)}, {s(sNb)}, 2")
        A(f"s_add_u32 {s(sT0)}, {s(sT0)}, {s(sWv)}")
        A(f"s_lshl_b32 {s(sT0)}, {s(sT0)}, 10")
        A(f"v_lshlrev_b32 {v(aO)}, 4, {v(l)}")
        A(f"v_add_u32 {v(aO)}, {s(sT0)}, {v(aO)}")
        A(f"v_mov_b32 {v(c1)}, 0xc0135761")
        A(f"s_mov_b32 {s(sC + 1)}, 0xbdd2d3e8")
        obase, ostride = (L.U1, 40960) if name == "m1" else (L.U2, 108 * 1024)
    else:
        A(f"v_and_b32 {v(t0)}, 7, {v(l)}")
        A(f"v_lshrrev_b32 {v(t1)}, 3, {v(l)}")
        A(f"s_lshl_b32 {s(sT0)}, {s(sWv)}, 3")
        A(f"v_add_u32 {v(t1)}, {s(sT0)}, {v(t1)}")
        A(f"v_mul_u32_u24 {v(aR)}, {PS}, {v(t0)}")
        A(f"v_lshl_add_u32 {v(aR)}, {v(t1)}, 4, {v(aR)}")
        A(f"v_mul_u32_u24 {v(aE)}, 1280, {v(t1)}")
        A(f"v_lshl_add_u32 {v(aE)}, {v(t0)}, 3, {v(aE)}")
        A(f"s_lshl_b32 {s(sT0)}, {s(sNb)}, 7")
        A(f"v_add_u32 {v(aE)}, {s(sT0)}, {v(aE)}")
        if epi == "part":
            A(f"v_lshlrev_b32 {v(aO)}, 1, {v(aE)}")
            A(f"s_mul_i32 {s(sT0)}, {s(sKq)}, {2048 * 2560}")
            A(f"v_add_u32 {v(aO)}, {s(sT0)}, {v(aO)}")
            obase, ostride = L.PO, 81920
        elif epi == "res1":
            obase, ostride = L.X1, 40960
        else:
            obase, ostride = 0, 40960
            A(f"v_lshlrev_b32 {v(t0)}, 4, {v(t0)}")
            A(f"s_lshl_b32 {s(sT0)}, {s(sNb)}, 8")
            A(f"s_add_u32 {s(sT0)}, {s(sT0)}, {L.MOD + 5 * 2560}")
            for T in range(2):
                A(f"buffer_load_dwordx4 {v(GB + 4 * T, 4)}, {v(t0)}, {s(SW, 4)}, {s(sT0)} offen offset:{128 * T} {LD}")
    nE = {"part": 0, "gelu": 0, "res1": 2, "final": 4}[epi]
    nS = 1 if epi == "gelu" else 2

    def a_load(j):
        A(f"buffer_load_dwordx4 {v(AF + 4 * j, 4)}, {v(aA)}, {s(SA, 4)}, {s(sK + (j >> 2))} offen offset:{1024 * (j & 3)} {LD}")

    A("s_waitcnt lgkmcnt(0)")
    A("s_barrier")
    A(f"s_mov_b32 {s(sBuf)}, 0")
    A(f"s_mul_i32 {s(sE)}, {s(sStep)}, {astride}")
    if wait:
        wait(A, True)
    for j in range(KSW):
        a_load(j)
    A("s_waitcnt vmcnt(0)")
    top = A.newlabel(name)
    A.label(top)
    A(f"v_add_u32 {v(aA)}, {s(sE)}, {v(aA)}")
    A(f"s_mul_i32 {s(sO)}, {s(sSeg)}, {ostride}")
    for i in range(nE):
        base = L.H2 if epi == "res1" else (L.X1, L.X2)[i >> 1]
        if i % 2 == 0:
            A(f"s_add_u32 {s(sT0)}, {s(sO)}, {base}")
        A(f"buffer_load_dwordx2 {v(EL + 2 * i, 2)}, {v(aE)}, {s(SW, 4)}, {s(sT0)} offen offset:{64 * (i & 1)} {LD}")
    if obase:
        A(f"s_add_u32 {s(sO)}, {s(sO)}, {obase}")
    if wait:
        wait(A, False)
    for j in range(KSW):
        A(f"s_waitcnt vmcnt({KSW - 1 + nS + nE})")
        for T in range(2):
            mf32(A, v(ACC + 16 * T, 16), a(8 * j + 4 * T, 4), v(AF + 4 * j, 4), "0" if j == 0 else v(ACC + 16 * T, 16))
        a_load(j)
    A(f"v_add_u32 {v(t0)}, {s(sBuf)}, {v(aW)}")
    A(f"v_add_u32 {v(t1)}, {s(sBuf)}, {v(aR)}")
    for T in range(2):
        for a4 in range(4):
            A(f"ds_write_b128 {v(t0)}, {v(ACC + 16 * T + 4 * a4, 4)} offset:{T * TS + 2 * a4 * PS}")
    A(f"s_xor_b32 {s(sBuf)}, {s(sBuf)}, {BSZ}")
    A("s_waitcnt lgkmcnt(0)")
    A("s_barrier")
    second = 2 * PS if epi == "gelu" else TS
    for src in range(4):
        for b in range(2):
            A(f"ds_read_b128 {v(RD + 8 * src + 4 * b, 4)}, {v(t1)} offset:{src * WSZ + b * second}")
    A("s_waitcnt lgkmcnt(4)")
    for i in range(8):
        A(f"v_add_f32 {v(RD + i)}, {v(RD + i)}, {v(RD + 8 + i)}")
    A("s_waitcnt lgkmcnt(0)")
    for i in range(8):
        A(f"v_add_f32 {v(RD + 16 + i)}, {v(RD + 16 + i)}, {v(RD + 24 + i)}")
    for i in range(8):
        A(f"v_add_f32 {v(RD + i)}, {v(RD + i)}, {v(RD + 16 + i)}")
    PK, TM = RD + 8, RD + 16
    if epi == "part":
        for T in range(2):
            A(f"buffer_store_dwordx4 {v(RD + 4 * T, 4)}, {v(aO)}, {s(SW, 4)}, {s(sO)} offen offset:{128 * T} {ST}")
    else:
        for i in range(4):
            rnd2(A, RD + 2 * i, RD + 2 * i + 1, PK + i)
        if epi == "gelu":
            for i in range(8):
                gelu(A, RD + i, TM + i)
        else:
            A(f"s_waitcnt vmcnt({KSW})")
            for i in range(4):
                unpack(A, EL + i, TM + 2 * i, TM + 2 * i + 1)
            for i in range(8):
                A(f"v_add_f32 {v(RD + i)}, {v(RD + i)}, {v(TM + i)}")
            if epi == "final":
                for i in range(4):
                    rnd2(A, RD + 2 * i, RD + 2 * i + 1, PK + i)
                for i in range(8):
                    A(f"v_mul_f32 {v(RD + i)}, {v(RD + i)}, {v(GB + i)}")
                for i in range(4):
                    rnd2(A, RD + 2 * i, RD + 2 * i + 1, PK + i)
                for i in range(4):
                    unpack(A, EL + 4 + i, TM + 2 * i, TM + 2 * i + 1)
                for i in range(8):
                    A(f"v_add_f32 {v(RD + i)}, {v(RD + i)}, {v(TM + i)}")
        for i in range(4):
            A(f"v_cvt_pk_bf16_f32 {v(PK + i)}, {v(RD + 2 * i)}, {v(RD + 2 * i + 1)}")
        if epi == "gelu":
            A(f"buffer_store_dwordx4 {v(PK, 4)}, {v(aO)}, {s(SW, 4)}, {s(sO)} offen {ST}")
        else:
            sd, pol = (SW, ST) if epi == "res1" else (SC, "")
            for T in range(2):
                A(f"buffer_store_dwordx2 {v(PK + 2 * T, 2)}, {v(aE)}, {s(sd, 4)}, {s(sO)} offen offset:{64 * T} {pol}")
    if done:
        done(A)
    A(f"s_add_u32 {s(sSeg)}, {s(sSeg)}, {s(sStep)}")
    A(f"s_cmp_lt_u32 {s(sSeg)}, {s(sEnd)}")
    A(f"s_cbranch_scc1 {top}")
    A("s_waitcnt vmcnt(0)")


def attn_role(A, wait=None, done=None):
    l, g, t0, t1, aF, aK, aV, aL, m, tt = 1, 2, 3, 4, 5, 6, 7, 8, 9, 10
    Q, K, V, KM, VM, S, SM, P, PM, O, PK = 16, 48, 80, 112, 144, 152, 168, 184, 192, 16, 112
    sHd, sB, sM, sLb, sMask = 56, 57, 58, 59, 64
    common(A, ())
    A(f"s_lshl_b32 {s(sHd)}, {s(sRole)}, 2")
    A(f"s_add_u32 {s(sHd)}, {s(sHd)}, {s(sWv)}")
    A(f"s_lshl_b32 {s(sLb)}, {s(sWv)}, 11")
    A(f"v_and_b32 {v(l)}, 63, v0")
    A(f"v_bfe_u32 {v(g)}, v0, 4, 2")
    A(f"v_lshlrev_b32 {v(aL)}, 4, {v(l)}")
    A(f"v_and_b32 {v(t0)}, 1, {v(g)}")
    A(f"v_lshlrev_b32 {v(aF)}, 10, {v(t0)}")
    A(f"v_lshrrev_b32 {v(t0)}, 1, {v(g)}")
    A(f"v_lshl_add_u32 {v(aF)}, {v(t0)}, 8, {v(aF)}")
    A(f"v_and_b32 {v(t1)}, 15, {v(l)}")
    A(f"v_lshl_add_u32 {v(aF)}, {v(t1)}, 4, {v(aF)}")
    A(f"v_lshlrev_b32 {v(aV)}, 3, {v(t0)}")
    A(f"v_and_b32 {v(t1)}, 31, {v(l)}")
    A(f"v_lshl_add_u32 {v(aV)}, {v(t1)}, 4, {v(aV)}")
    A(f"v_lshlrev_b32 {v(aK)}, 6, {v(t0)}")
    A(f"v_bfe_u32 {v(tt)}, {v(l)}, 2, 2")
    A(f"v_lshl_add_u32 {v(aK)}, {v(tt)}, 4, {v(aK)}")
    A(f"v_and_b32 {v(tt)}, 1, {v(l)}")
    A(f"v_lshl_add_u32 {v(aK)}, {v(tt)}, 3, {v(aK)}")
    A(f"v_add_u32 {v(aK)}, {s(sLb)}, {v(aK)}")
    A.c("causal masks: key 8(r>>2) + 4hi + (r&3) <= query")
    A(f"v_lshlrev_b32 {v(t0)}, 2, {v(t0)}")
    A(f"v_sub_u32 {v(t1)}, {v(t1)}, {v(t0)}")
    for r in range(16):
        A(f"v_cmp_le_i32 {s(sMask + 2 * r, 2)}, {8 * (r >> 2) + (r & 3)}, {v(t1)}")
    A(f"s_mov_b32 {s(sC)}, 0x3db504f3")
    A(f"s_mov_b32 {s(sC + 1)}, 0x3fb8aa3b")
    A(f"v_mov_b32 {v(11)}, 0xce6e0000")
    top = A.newlabel("attn")
    A.label(top)
    A(f"s_lshl_b32 {s(sT0)}, {s(sSeg)}, 5")
    A(f"s_add_u32 {s(sT0)}, {s(sT0)}, {s(sHd)}")
    A(f"s_lshl_b32 {s(sM)}, {s(sT0)}, 11")
    A(f"s_lshl_b32 {s(sB)}, {s(sT0)}, 13")
    for reg, base in ((K, L.KT), (Q, L.QT), (V, L.VT)):
        for hf in range(2):
            A(f"s_add_u32 {s(sT0)}, {s(sB)}, {base + 4096 * hf}")
            for i in range(4):
                A(f"buffer_load_dwordx4 {v(reg + 16 * hf + 4 * i, 4)}, {v(aF)}, {s(SW, 4)}, {s(sT0)} offen offset:{2048 * (i >> 1) + 512 * (i & 1)} {LD}")
    if wait:
        wait(A)
    A(f"s_add_u32 {s(sT0)}, {s(sM)}, {L.KM}")
    for i in range(2):
        A(f"s_add_u32 m0, {s(sLb)}, {1024 * i}")
        A(f"buffer_load_dwordx4 {v(aL)}, {s(SW, 4)}, {s(sT0)} offen {LD} lds")
        A(f"s_add_u32 {s(sT0)}, {s(sT0)}, 1024")
    A(f"s_add_u32 {s(sT0)}, {s(sM)}, {L.VM}")
    for T in range(4):
        A(f"buffer_load_dwordx2 {v(VM + 2 * T, 2)}, {v(aV)}, {s(SW, 4)}, {s(sT0)} offen offset:{512 * T} {LD}")
    for i in range(8):
        A(f"s_waitcnt vmcnt({21 - i})")
        mf32(A, v(S, 16), v(K + 4 * i, 4), v(Q + 4 * i, 4), "0" if i == 0 else v(S, 16))
    A("s_waitcnt vmcnt(4)")
    for i in range(8):
        for jj in range(2):
            A(f"ds_read_b64_tr_b16 {v(KM + 4 * i + 2 * jj, 2)}, {v(aK)} offset:{(16 * i + 8 * jj) * 16}")

    def scale(r0, n):
        for i in range(0, n, 2):
            rnd2(A, r0 + i, r0 + i + 1, tt)
        for i in range(n):
            A(f"v_mul_f32 {v(r0 + i)}, {s(sC)}, {v(r0 + i)}")
        for i in range(0, n, 2):
            rnd2(A, r0 + i, r0 + i + 1, tt)

    for i in range(8):
        A(f"s_waitcnt lgkmcnt({14 - 2 * i})")
        mf32(A, v(SM, 16), v(KM + 4 * i, 4), v(Q + 4 * i, 4), "0" if i == 0 else v(SM, 16))
    scale(S, 16)
    for r in range(16):
        A(f"v_cndmask_b32 {v(S + r)}, {v(11)}, {v(S + r)}, {s(sMask + 2 * r, 2)}")
    scale(SM, 4)
    vals = [S + i for i in range(16)] + [SM + i for i in range(4)]
    A(f"v_max3_f32 {v(m)}, {v(vals[0])}, {v(vals[1])}, {v(vals[2])}")
    for i in range(3, 19, 2):
        A(f"v_max3_f32 {v(m)}, {v(m)}, {v(vals[i])}, {v(vals[i + 1])}")
    A(f"v_max_f32 {v(m)}, {v(m)}, {v(vals[19])}")
    A(f"v_mov_b32 {v(tt)}, {v(m)}")
    A(f"v_permlane32_swap_b32 {v(m)}, {v(tt)}")
    A(f"v_max_f32 {v(m)}, {v(m)}, {v(tt)}")
    for r in vals:
        A(f"v_sub_f32 {v(r)}, {v(r)}, {v(m)}")
    for r in vals:
        A(f"v_mul_f32 {v(r)}, {s(sC + 1)}, {v(r)}")
    for r in vals:
        A(f"v_exp_f32 {v(r)}, {v(r)}")
    A(f"v_add_f32 {v(m)}, {v(vals[0])}, {v(vals[1])}")
    A(f"v_add_f32 {v(tt)}, {v(vals[2])}, {v(vals[3])}")
    for i in range(4, 20, 2):
        A(f"v_add_f32 {v(m)}, {v(m)}, {v(vals[i])}")
        A(f"v_add_f32 {v(tt)}, {v(tt)}, {v(vals[i + 1])}")
    A(f"v_add_f32 {v(m)}, {v(m)}, {v(tt)}")
    A(f"v_mov_b32 {v(tt)}, {v(m)}")
    A(f"v_permlane32_swap_b32 {v(m)}, {v(tt)}")
    A(f"v_add_f32 {v(m)}, {v(m)}, {v(tt)}")
    A(f"v_rcp_f32 {v(m)}, {v(m)}")
    for r in vals:
        A(f"v_mul_f32 {v(r)}, {v(r)}, {v(m)}")
    for b in range(2):
        for i, r in enumerate((4 * b, 4 * b + 2, 8 + 4 * b, 10 + 4 * b)):
            A(f"v_cvt_pk_bf16_f32 {v(P + 4 * b + i)}, {v(S + r)}, {v(S + r + 1)}")
    for i in range(2):
        A(f"v_cvt_pk_bf16_f32 {v(PM + i)}, {v(SM + 2 * i)}, {v(SM + 2 * i + 1)}")
    A("s_waitcnt vmcnt(0)")
    for T in range(4):
        A(f"v_mfma_f32_32x32x8_bf16 {v(O + 16 * T, 16)}, {v(VM + 2 * T, 2)}, {v(PM, 2)}, 0")
    for b in range(2):
        for T in range(4):
            mf32(A, v(O + 16 * T, 16), v(V + 8 * T + 4 * b, 4), v(P + 4 * b, 4), v(O + 16 * T, 16))
    A(f"s_add_u32 {s(sT0)}, {s(sB)}, {L.O}")
    A(f"s_add_u32 {s(sT1)}, {s(sT0)}, 4096")
    for T in range(4):
        for i in range(8):
            A(f"v_cvt_pk_bf16_f32 {v(PK + 8 * T + i)}, {v(O + 16 * T + 2 * i)}, {v(O + 16 * T + 2 * i + 1)}")
        for b in range(2):
            k = 2 * T + b
            A(f"buffer_store_dwordx4 {v(PK + 4 * k, 4)}, {v(aL)}, {s(SW, 4)}, {s(sT1 if k >= 4 else sT0)} offen offset:{1024 * (k & 3)} {ST}")
    if done:
        done(A)
    A(f"s_add_u32 {s(sSeg)}, {s(sSeg)}, {s(sStep)}")
    A(f"s_cmp_lt_u32 {s(sSeg)}, {s(sEnd)}")
    A(f"s_cbranch_scc1 {top}")
    A("s_waitcnt vmcnt(0)")


def probe_role(A):
    common(A, ())
    A("v_mov_b32 v2, 0")
    A("v_mov_b32 v3, -1")
    for k in range(2):
        A(f"s_mov_b32 {s(sK + k)}, -1")
    for rep in range(5):
        for k in range(2):
            A(f"s_mov_b32 {s(sT2)}, {L.EXM + 6144 + 8192 * k}")
            A(f"s_memtime {s(56, 2)}")
            A("s_waitcnt lgkmcnt(0)")
            A(f"buffer_store_dword v3, v2, {s(SW, 4)}, {s(sT2)} offen sc1")
            A("s_waitcnt vmcnt(0)")
            A(f"s_memtime {s(58, 2)}")
            A("s_waitcnt lgkmcnt(0)")
            if rep:
                A(f"s_sub_u32 {s(sT0)}, s58, s56")
                A(f"s_min_u32 {s(sK + k)}, {s(sK + k)}, {s(sT0)}")
    A(f"s_cmp_lt_u32 {s(sK + 1)}, {s(sK)}")
    A(f"s_cselect_b32 {s(sT0)}, 8192, 0")
    A(f"v_mov_b32 v3, {s(sT0)}")
    A(f"s_mov_b32 {s(sT2)}, {L.PAR}")
    A(f"buffer_store_dword v3, v2, {s(SW, 4)}, {s(sT2)} offen sc1")
```

```python
import sys
from asmlib import Asm, build_file, s
import roles as R, rec, layout as L

def simple(nwg, setup, body):
    A = Asm(); simple.n += 1; A.uid = 10000 * simple.n
    end = A.newlabel("end")
    A(f"s_cmp_ge_u32 s2, {nwg}")
    A(f"s_cbranch_scc1 {end}")
    setup(A); body(A)
    A.label(end)
    A("s_endpgm")
    return A
simple.n = 0

def split(nrole, ngrp):
    def f(A):
        A(f"s_mul_hi_u32 {s(R.sSeg)}, s2, {(2**32 + nrole - 1) // nrole}")
        A(f"s_mul_i32 {s(R.sT0)}, {s(R.sSeg)}, {nrole}")
        A(f"s_sub_u32 {s(R.sRole)}, s2, {s(R.sT0)}")
        A(f"s_mov_b32 {s(R.sStep)}, {ngrp}")
        A(f"s_mov_b32 {s(R.sEnd)}, 64")
    return f

def split_x(nrole, per, nk=1):
    def f(A):
        A(f"s_lshr_b32 {s(R.sT1)}, s2, 3")
        A(f"s_mul_hi_u32 {s(R.sT2)}, {s(R.sT1)}, {(2**32 + nrole - 1) // nrole}")
        A(f"s_mul_i32 {s(R.sT0)}, {s(R.sT2)}, {nrole}")
        A(f"s_sub_u32 {s(R.sRole)}, {s(R.sT1)}, {s(R.sT0)}")
        A(f"s_and_b32 {s(R.sT0)}, s2, 7")
        A(f"s_mul_i32 {s(R.sT0)}, {s(R.sT0)}, {per}")
        A(f"s_add_u32 {s(R.sSeg)}, {s(R.sT0)}, {s(R.sT2)}")
        if nk > 1:
            A(f"s_and_b32 {s(R.sT0)}, {s(R.sSeg)}, {nk - 1}")
            A(f"s_mul_i32 {s(R.sT0)}, {s(R.sT0)}, {nrole}")
            A(f"s_add_u32 {s(R.sRole)}, {s(R.sRole)}, {s(R.sT0)}")
            A(f"s_lshr_b32 {s(R.sSeg)}, {s(R.sSeg)}, 2")
        A(f"s_mov_b32 {s(R.sStep)}, {8 * per // nk}")
        A(f"s_mov_b32 {s(R.sEnd)}, 64")
    return f

def rows(nwg):
    def f(A):
        A(f"s_lshl_b32 {s(R.sSeg)}, s2, 2")
        A(f"s_mov_b32 {s(R.sStep)}, {4 * nwg}")
        A(f"s_mov_b32 {s(R.sEnd)}, 2048")
    return f

def mod_body(A):
    pr, out = A.newlabel("probe"), A.newlabel("out")
    A("s_cmp_eq_u32 s2, 120")
    A(f"s_cbranch_scc1 {pr}")
    R.mod_role(A)
    A(f"s_branch {out}")
    A.label(pr)
    R.probe_role(A)
    A.label(out)

K = []
def add(name, nwg, lds, A, vg, ac): K.append((name + "_kernel", nwg, lds, A, vg, ac))
add("mod", 121, 1024, simple(121, lambda A: A(f"s_mov_b32 {s(R.sRole)}, s2"), mod_body), 96, 96)
add("ln1", 512, 0, simple(512, rows(512), R.ln1_role), 64, 64)
add("qkv", 192, 163840, simple(192, split(96, 2), R.qkv_role), 512, 256)
ra = rec.standalone(None, None, False, 0)
add("rec", 256, rec.LDS_BYTES, ra, 512, 256)
add("attn", 512, 8192, simple(512, split(8, 64), R.attn_role), 200, 200)
add("op", 240, 163840, simple(240, split_x(10, 3, 4), lambda A: R.gemm_role(A, "op")), 512, 256)
add("ln23", 512, 0, simple(512, rows(512), R.ln23_role), 112, 112)
add("m1", 240, 163840, simple(240, split_x(10, 3), lambda A: R.gemm_role(A, "m1")), 512, 256)
add("m2", 240, 163840, simple(240, split_x(10, 3), lambda A: R.gemm_role(A, "m2")), 512, 256)
add("ln4", 512, 0, simple(512, rows(512), R.ln4_role), 64, 64)
add("m3", 216, 163840, simple(216, split_x(27, 1), lambda A: R.gemm_role(A, "m3")), 512, 256)
add("m4", 240, 163840, simple(240, split_x(10, 3), lambda A: R.gemm_role(A, "m4")), 512, 256)
head = [l for l in open("adaLN_cond__memory_aug_recurrent_mem_tr__mixer_s_mlp__prompt.s.ref").read().split("\n") if l.startswith(";") and "@launch" not in l and "Override" not in l and "grid=ceil" not in l]
txt, n = build_file(head, [(k[0], k[1], 256, k[2]) for k in K], [(k[0], k[3], k[4], k[5]) for k in K])
open(sys.argv[1], "w").write(txt)
print("nops", n, "bytes", len(txt))
```

```python
WS_BYTES = 268435456
FLAGS = 0x0
EPOCH = 0x80
F_MOD, F_LN1, F_QKV, F_REC, F_AT, F_OP, F_LN23, F_M1, F_M2, F_LN4, F_M3 = (0x1000 + 0x800 * i for i in range(11))
PAR = 0x100
STAMP = 0x8000
MOD = 0x20000
PL = 0x100000
PL_G = 163840
EXM = 0x400000
EXV = 0x600000
EX2 = 0x7400000 - 0x400000
D_EPOCH = 128
D_PAR = 136
D_RINIT = 0
H = 0x800000
KM = 0xC00000
VM = 0x1000000
QT = 0x1400000
KT = 0x2400000
VT = 0x3400000
O = 0x4400000
X2 = 0x5400000
H2 = 0x5800000
T3 = 0x5C00000
U1 = 0x6000000
X1 = 0x6400000
T4 = 0x6800000
U2 = 0x6C00000
PO = 0x7C00000
END = 0x9000000

K_X, K_MEM0, K_WQ, K_WK, K_WV, K_WO, K_SEG, K_BX, K_W1, K_W2, K_W3, K_W4, K_C, K_WMOD, K_OUT, K_DBG, K_WS = (8 * i for i in range(17))
```

```python
from asmlib import Asm, v, a, s
import layout as L

MEM = 0
KTL = MEM + 10240
QX = KTL + 8192
KX = QX + 2048
OX = KX + 4096
ORS = 272
WST = 32768
LDS_BYTES = 163840
LAST = 63
PH = None
DUMPS = None
sPh = 92

SW = 4
ST = 8
SW2 = 68
P_MEM0, P_WQ, P_WK, P_WV, P_WO, P_DBG, P_WS = 12, 14, 16, 18, 20, 22, 24
sX, sH, sWv, sStep, sTag, sSpin = 26, 27, 28, 29, 30, 31
sML, sMRw, sMRr, sKT0, sTagV, sVTo, sVTp, sKM, sVM = 32, 33, 34, 35, 36, 37, 38, 39, 40
sPL, sVXw, sVXr, sOwn, sMLb = 41, 42, 43, 44, 45
sVXbw, sVXbr, sMLp, sKT1, sW1k = 64, 65, 66, 67, 72
sT0, sT1, sT2, sT3, sCs, sPar = 46, 47, 48, 49, 50, 51
sFast = 52
sE0, sE1, sKnown, sRF, sFM = 96, 97, 73, 76, 74
FUSED = False
D1, D2, VXP, NOWAIT, PIPE, H1P, EDMA, B5, H2P, R2, V2 = 3, 14, 1, 0, 5, 2, 1, 0, 6, 0, 1
sTime = 54
sEx = 60

vIdx = 1
vOnes = 2
vSel = 6
vPm = 10
vVo = 12
vVp = 14
aLin, aWst, aR1, aR2, aW1, aW4, aW2, aQW, aKW, aQR, aKR, aOW, aOR, aP4, aP1, aR3, aR4, aVP = range(16, 34)
T2a, T2b, vV2 = 0, 34, 35
vVt = 36
X = 44
Y = 84
Z = 116
U = 132
T = 156
WV0 = 160


def wreg(i):
    return a(8 * i, 8) if i < 32 else v(WV0 + 8 * (i - 32), 8)


def wreg_part(i, off, n):
    return a(8 * i + off, n) if i < 32 else v(WV0 + 8 * (i - 32) + off, n)


LDSF = [("q", 0, 0), ("q", 1, 0), ("q", 0, 1), ("q", 1, 1), ("q", 0, 2), ("q", 1, 2),
        ("q", 0, 3), ("q", 1, 3), ("q", 0, 4), ("q", 1, 4), ("k", 0, 0), ("k", 0, 2),
        ("q", 1, 5), ("q", 1, 6), ("q", 1, 7), ("q", 1, 8)]
BUF = [Y, Y + 8, Y + 16, Y + 24, Z, Z + 8]
ALLF = ([("q", t, f) for t in range(2) for f in range(10)] + [("k", t, f) for t in range(2) for f in range(10)]
        + [("v", 0, f) for f in range(10)] + [("o", t, kf) for t in range(5) for kf in range(2)])
RES = {x: i for i, x in enumerate(y for y in ALLF if y not in LDSF)}
assert len(RES) == 44


def buf_of(x):
    return BUF[LDSF.index(x) % 6]


def operand(x):
    return wreg(RES[x]) if x in RES else v(buf_of(x), 8)


OPACC = [X + 20 + 4 * i for i in range(5)]
OPQ = X
HQ = 16


def fill_dst(x, off):
    return wreg_part(RES[x], off, 2) if x in RES else v(HQ + 8 * LDSF.index(x) + off, 2)


def srd(A, base, ptr, nbytes):
    A(f"s_mov_b32 {s(base)}, {s(ptr)}")
    A(f"s_and_b32 {s(base + 1)}, {s(ptr + 1)}, 0xffff")
    A(f"s_mov_b32 {s(base + 2)}, {nbytes}")
    A(f"s_mov_b32 {s(base + 3)}, 0x20000")


def retry(A, top, spin=None):
    spin = sSpin if spin is None else spin
    ok = A.newlabel("ok")
    A(f"s_cbranch_vccz {ok}")
    A(f"s_sub_u32 {s(spin)}, {s(spin)}, 1")
    A(f"s_cbranch_scc0 {top}")
    A(f"s_mov_b32 {s(spin)}, 0")
    A.label(ok)


def masked_retry(A, top):
    ok = A.newlabel("ok")
    A(f"s_cbranch_vccz {ok}")
    A("s_mov_b64 exec, vcc")
    A(f"s_sub_u32 {s(sSpin)}, {s(sSpin)}, 1")
    A(f"s_cbranch_scc0 {top}")
    A(f"s_mov_b32 {s(sSpin)}, 0")
    A("s_mov_b64 exec, -1")
    A.label(ok)


def lane_fields(A, vn, vg):
    A(f"v_and_b32 {v(vn)}, 15, v0")
    A(f"v_bfe_u32 {v(vg)}, v0, 4, 2")


PHSEL = None


def phase(A, name):
    if PH is None or (PHSEL and name not in PHSEL):
        return
    if name not in PH:
        PH.append(name)
    A(f"s_memtime {s(74 + 2 * PH.index(name), 2)}")


TRACE = 0


def phase_fold(A):
    if PH is None:
        return
    A("s_waitcnt lgkmcnt(0)")
    if TRACE:
        A(f"s_lshl_b32 s62, {s(sX)}, 5")
        A(f"s_add_u32 s62, s62, {s(sH)}")
        A(f"s_lshl_b32 s62, s62, 2")
        A(f"s_add_u32 s62, s62, {s(sWv)}")
        A(f"s_lshl_b32 s62, s62, 6")
        A(f"s_add_u32 s62, s62, {s(sStep)}")
        A(f"s_lshl_b32 s62, s62, 5")
        A(f"s_add_u32 s62, s62, {L.X2}")
        for i in range(8):
            A(f"v_mov_b32 {v(X + 32 + i)}, {s(74 + 2 * i)}")
        A(f"v_mov_b32 {v(T2b)}, 0")
        A("s_mov_b64 exec, 1")
        A(f"buffer_store_dwordx4 {v(X + 32, 4)}, {v(T2b)}, {s(SW, 4)}, s62 offen")
        A(f"buffer_store_dwordx4 {v(X + 36, 4)}, {v(T2b)}, {s(SW, 4)}, s62 offen offset:16")
        A("s_mov_b64 exec, -1")
        A("s_waitcnt vmcnt(0)" if TRACE == 2 else "s_nop 0")
        return
    for i in range(len(PHSEL)):
        A(f"s_sub_u32 s62, {s(74 + 2 * i)}, s73")
        A(f"s_add_u32 {s(92 + i)}, {s(92 + i)}, s62")
    A(f"s_mov_b32 s73, {s(74 + 2 * (len(PHSEL) - 1))}")


CNT = False


def count(A, i):
    if CNT:
        A(f"s_add_u32 {s(98 + i)}, {s(98 + i)}, 1")


def dump(A, name, reg):
    if DUMPS is None:
        return
    i = len(DUMPS)
    DUMPS.append(name)
    skip = A.newlabel("dump")
    A(f"s_cmp_lg_u32 {s(sStep)}, 0")
    A(f"s_cbranch_scc1 {skip}")
    A(f"s_lshl_b32 s62, {s(sX)}, 5")
    A(f"s_add_u32 s62, s62, {s(sH)}")
    A(f"s_lshl_b32 s62, s62, 12")
    A(f"s_add_u32 s62, s62, {L.X2 + i * 262144}")
    A("s_waitcnt lgkmcnt(0)")
    A("s_nop 7")
    A(f"buffer_store_dwordx4 {v(reg, 4)}, {v(aW1)}, {s(SW, 4)}, s62 offen")
    A("s_waitcnt vmcnt(0)")
    A.label(skip)


def partial_addrs(A, n, g, t0, t1, d4, d1):
    A(f"s_lshl_b32 {s(sT0)}, {s(sWv)}, 15")
    A(f"s_lshl_b32 {s(sT1)}, {s(sH)}, 7")
    A(f"s_add_u32 {s(sT0)}, {s(sT0)}, {s(sT1)}")
    A(f"v_and_b32 {v(t1)}, 1, {v(n)}")
    A(f"v_lshl_add_u32 {v(t1)}, {v(g)}, 1, {v(t1)}")
    A(f"v_lshlrev_b32 {v(t1)}, 4, {v(t1)}")
    A(f"v_lshrrev_b32 {v(t0)}, 1, {v(n)}")
    A(f"v_lshl_add_u32 {v(d4)}, {v(t0)}, 12, {v(t1)}")
    A(f"v_add_u32 {v(d4)}, {s(sT0)}, {v(d4)}")
    A(f"s_lshl_b32 {s(sT0)}, {s(sWv)}, 13")
    A(f"s_add_u32 {s(sT0)}, {s(sT0)}, {s(sT1)}")
    A(f"s_add_u32 {s(sT0)}, {s(sT0)}, {32 * 4096}")
    A(f"v_and_b32 {v(t0)}, 3, {v(t0)}")
    A(f"v_lshl_add_u32 {v(d1)}, {v(t0)}, 2, {v(t1)}")
    A(f"v_lshrrev_b32 {v(t0)}, 3, {v(n)}")
    A(f"v_lshl_add_u32 {v(d1)}, {v(t0)}, 12, {v(d1)}")
    A(f"v_add_u32 {v(d1)}, {s(sT0)}, {v(d1)}")


def ex_bases(A):
    A(f"s_mul_i32 {s(sT0)}, {s(sX)}, {L.PL_G}")
    A(f"s_add_u32 {s(sPL)}, {s(sT0)}, {L.PL}")
    A(f"s_lshl_b32 {s(sT0)}, {s(sX)}, 20")
    A(f"s_add_u32 {s(sT0)}, {s(sT0)}, {L.EXM}")
    A(f"s_add_u32 {s(sMRw)}, {s(sT0)}, {s(sPar)}")
    A(f"s_xor_b32 {s(sML)}, {s(sMRw)}, 8192")
    A(f"s_xor_b32 {s(sMRr)}, {s(sMRw)}, {1 << 20}")
    A(f"s_mov_b32 {s(sMLb)}, {s(sML)}")
    A(f"s_lshl_b32 {s(sT0)}, {s(sX)}, 20")
    A(f"s_lshl_b32 {s(sT1)}, {s(sH)}, 15")
    A(f"s_add_u32 {s(sT0)}, {s(sT0)}, {s(sT1)}")
    A(f"s_xor_b32 {s(sT1)}, {s(sPar)}, 8192")
    A(f"s_add_u32 {s(sT0)}, {s(sT0)}, {s(sT1)}")
    A(f"s_add_u32 {s(sVXw)}, {s(sT0)}, {L.EXV}")
    A(f"s_xor_b32 {s(sVXr)}, {s(sVXw)}, {1 << 20}")


def prologue(A, lf):
    l, n, g, t0, t1, t2, t3 = 1, 2, 3, 4, 5, 6, 7
    uw, un, rw, rn = 8, 9, 10, 11
    b1w, b1n, b3w, b3n = 12, 13, 14, 15
    dq, dn, ow, on = 144, 145, 146, 147
    lane_fields(A, n, g)
    A(f"v_and_b32 {v(l)}, 63, v0")
    def init_exchange():
        A.c("exchange lines: tags set to 1, broadcast slots set to all-ones")
        for i in range(4):
            A(f"v_mov_b32 {v(148 + i)}, -1")
        partial_addrs(A, n, g, t0, t1, 152, 153)
        ex_bases(A)
        A(f"buffer_store_dwordx4 v[148:151], v152, {s(SW, 4)}, {s(sPL)} offen {lf}")
        A(f"buffer_store_dword v148, v153, {s(SW, 4)}, {s(sPL)} offen {lf}")
        A(f"v_lshlrev_b32 {v(t0)}, 2, v0")
        A(f"v_lshlrev_b32 {v(t1)}, 4, v0")
        for off in (0, 4096, 16384, 20480):
            A(f"s_add_u32 {s(sT0)}, {s(sVXw)}, {off}")
            A(f"buffer_store_dwordx4 v[148:151], {v(t1)}, {s(SW, 4)}, {s(sT0)} offen sc1")
            A(f"s_add_u32 {s(sT0)}, {s(sT0)}, {L.EX2}")
            A(f"buffer_store_dwordx4 v[148:151], {v(t1)}, {s(SW, 4)}, {s(sT0)} offen sc1")
        A(f"s_lshl_b32 {s(sT1)}, {s(sH)}, 15")
        for k in range(2):
            for sb, fl, ex in ((sML, lf, 0), (sMRw, "sc1", 0), (sMRw, "sc1", L.EX2)):
                A(f"s_add_u32 {s(sT0)}, {s(sb)}, {s(sT1)}")
                if ex:
                    A(f"s_add_u32 {s(sT0)}, {s(sT0)}, {ex}")
                A(f"buffer_store_dwordx4 v[148:151], {v(t1)}, {s(SW, 4)}, {s(sT0)} offen {fl}")
                A(f"s_add_u32 {s(sT0)}, {s(sT0)}, 4096")
                A(f"buffer_store_dword v148, {v(t0)}, {s(SW, 4)}, {s(sT0)} offen {fl}")
            A(f"s_add_u32 {s(sT1)}, {s(sT1)}, 16384")

    NINIT = 22
    if not FUSED:
        init_exchange()
    A.c("DMA lane parts")
    A(f"s_lshr_b32 {s(sT0)}, {s(sWv)}, 1")
    A(f"s_lshl_b32 {s(sT0)}, {s(sT0)}, 3")
    A(f"s_lshl_b32 {s(sT1)}, {s(sWv)}, 4")
    A(f"v_lshlrev_b32 {v(t0)}, 1, {v(g)}")
    A(f"v_or_b32 {v(t0)}, {s(sT0)}, {v(t0)}")
    A(f"v_xor_b32 {v(t0)}, {v(t0)}, {v(n)}")
    A(f"v_lshlrev_b32 {v(uw)}, 4, {v(t0)}")
    A(f"v_add_u32 {v(rw)}, {s(sT1)}, {v(g)}")
    A(f"v_lshrrev_b32 {v(t0)}, 3, {v(l)}")
    A(f"v_add_u32 {v(rn)}, {s(sT1)}, {v(t0)}")
    A(f"v_lshrrev_b32 {v(t1)}, 1, {v(t0)}")
    A(f"v_xor_b32 {v(t1)}, {v(t1)}, {v(t0)}")
    A(f"v_and_b32 {v(t1)}, 2, {v(t1)}")
    A(f"s_lshr_b32 {s(sT0)}, {s(sT0)}, 1")
    A(f"v_or_b32 {v(t1)}, {s(sT0)}, {v(t1)}")
    A(f"v_and_b32 {v(t0)}, 7, {v(l)}")
    A(f"v_xor_b32 {v(t0)}, {v(t0)}, {v(t1)}")
    A(f"v_lshlrev_b32 {v(un)}, 4, {v(t0)}")
    A(f"v_lshlrev_b32 {v(dq)}, 13, {v(rw)}")
    A(f"v_lshlrev_b32 {v(dn)}, 13, {v(rn)}")
    A(f"v_mul_u32_u24 {v(ow)}, 1280, {v(rw)}")
    A(f"v_mul_u32_u24 {v(on)}, 1280, {v(rn)}")

    def tr_base(typ, bw, bn):
        A(f"v_lshrrev_b32 {v(t0)}, 2, {v(n)}")
        A(f"v_and_b32 {v(t2)}, 1, {v(g)}")
        A(f"v_lshrrev_b32 {v(t3)}, 1, {v(g)}")
        if typ == 1:
            A(f"v_lshl_add_u32 {v(t1)}, {v(t2)}, 5, {v(t0)}")
            A(f"v_lshl_add_u32 {v(t1)}, {v(t3)}, 2, {v(t1)}")
        else:
            A(f"v_lshlrev_b32 {v(t1)}, 4, {v(t3)}")
            A(f"v_lshl_add_u32 {v(t1)}, {v(t2)}, 2, {v(t1)}")
            A(f"v_lshrrev_b32 {v(t2)}, 1, {v(t0)}")
            A(f"v_lshl_add_u32 {v(t1)}, {v(t2)}, 3, {v(t1)}")
            A(f"v_and_b32 {v(t2)}, 1, {v(t0)}")
            A(f"v_add_u32 {v(t1)}, {v(t1)}, {v(t2)}")
        A.c("t2 = (b1^b2) | (b5^b3)<<1 of the row")
        A(f"v_lshrrev_b32 {v(t2)}, 1, {v(t1)}")
        A(f"v_xor_b32 {v(t2)}, {v(t2)}, {v(t1)}")
        A(f"v_bfe_u32 {v(t2)}, {v(t2)}, 1, 1")
        A(f"v_lshrrev_b32 {v(t3)}, 2, {v(t1)}")
        A(f"v_xor_b32 {v(t3)}, {v(t3)}, {v(t1)}")
        A(f"v_bfe_u32 {v(t3)}, {v(t3)}, 3, 1")
        A(f"v_lshl_add_u32 {v(t2)}, {v(t3)}, 1, {v(t2)}")
        A(f"v_bfe_u32 {v(t0)}, {v(n)}, 1, 1")
        A(f"v_lshl_add_u32 {v(bn)}, {v(t2)}, 1, {v(t0)}")
        A(f"v_lshlrev_b32 {v(bn)}, 4, {v(bn)}")
        A(f"v_lshl_add_u32 {v(bn)}, {v(t1)}, 7, {v(bn)}")
        A(f"v_and_b32 {v(t3)}, 1, {v(t1)}")
        A(f"v_lshl_add_u32 {v(t2)}, {v(t2)}, 1, {v(t3)}")
        A(f"v_lshl_add_u32 {v(bw)}, {v(t2)}, 1, {v(t0)}")
        A(f"v_lshlrev_b32 {v(bw)}, 4, {v(bw)}")
        A(f"v_lshl_add_u32 {v(bw)}, {v(t1)}, 8, {v(bw)}")
        A(f"v_and_b32 {v(t3)}, 1, {v(n)}")
        A(f"v_lshl_add_u32 {v(bw)}, {v(t3)}, 3, {v(bw)}")
        A(f"v_lshl_add_u32 {v(bn)}, {v(t3)}, 3, {v(bn)}")

    tr_base(1, b1w, b1n)
    tr_base(3, b3w, b3n)

    sQ, sK, sV = 64, 68, 72
    sHo, sHv, sMb, sMv, sXr, sOb, sXw, sXn, sXo, sOblk = 76, 77, 78, 79, 80, 81, 52, 53, 62, 63
    srd(A, sQ, P_WQ, 640 * 8192)
    srd(A, sK, P_WK, 640 * 8192)
    srd(A, sV, P_WV, 640 * 8192)
    srd(A, ST, P_WO, 4096 * 1280)
    A(f"s_lshl_b32 {s(sHo)}, {s(sH)}, 8")
    A(f"s_lshl_b32 {s(sT0)}, {s(sX)}, 7")
    A(f"s_add_u32 {s(sHv)}, {s(sHo)}, {s(sT0)}")
    A(f"s_lshl_b32 {s(sMb)}, {s(sWv)}, 12")
    A(f"s_lshl_b32 {s(sMv)}, {s(sWv)}, 11")
    A(f"s_mul_i32 {s(sXr)}, {s(sX)}, {320 * 8192}")
    A(f"s_mul_i32 {s(sOb)}, {s(sH)}, {128 * 1280}")
    A(f"s_mul_i32 {s(sT0)}, {s(sX)}, 640")
    A(f"s_add_u32 {s(sOb)}, {s(sOb)}, {s(sT0)}")
    A(f"s_lshl_b32 {s(sXw)}, {s(sWv)}, 6")
    sXk = 82
    A(f"s_lshl_b32 {s(sXk)}, {s(sX)}, 5")
    A(f"s_xor_b32 {s(sXk)}, {s(sXk)}, {s(sXw)}")
    A(f"s_lshl_b32 {s(sXn)}, {s(sWv)}, 5")
    A(f"s_and_b32 {s(sXo)}, {s(sWv)}, 1")
    A(f"s_lshl_b32 {s(sXo)}, {s(sXo)}, 7")
    A(f"s_lshr_b32 {s(sOblk)}, {s(sWv)}, 1")
    A(f"s_lshl_b32 {s(sOblk)}, {s(sOblk)}, 14")

    def issue(c):
        base = (c % 4) * 40960
        if c < 10:
            if c < 5:
                A(f"s_add_u32 {s(sT1)}, {s(sXr)}, {64 * c * 8192}")
            else:
                A(f"s_sub_u32 {s(sT1)}, {64 * c * 8192}, {s(sXr)}")
            A(f"s_add_u32 {s(sT2)}, {s(sT1)}, {s(sHv)}")
            A(f"s_add_u32 {s(sT1)}, {s(sT1)}, {s(sHo)}")
            wide = ((sQ, 0), (sK, 0))
            nar = (sV, sT2, 0)
            rs, rowW, rowN = 8192, dq, dn
        else:
            A(f"s_xor_b32 {s(sT1)}, {s(sX)}, {c - 10}")
            A(f"s_mul_i32 {s(sT1)}, {s(sT1)}, {64 * 1280}")
            A(f"s_add_u32 {s(sT1)}, {s(sT1)}, {s(sOb)}")
            wide = ((ST, 0), (ST, 256))
            nar = (ST, sT1, 512)
            rs, rowW, rowN = 1280, ow, on
        for i in range(4):
            A(f"v_xor_b32 {v(t0)}, {64 * (i & 1) + 128 * (i >> 1)}, {v(uw)}")
            A(f"v_add_u32 {v(t0)}, {v(t0)}, {v(rowW)}")
            for mi, (sd, co) in enumerate(wide):
                A(f"s_add_u32 m0, {s(sMb)}, {base + 16384 * mi + i * 1024}")
                A(f"s_add_u32 {s(sT0)}, {s(sT1)}, {4 * i * rs + co}")
                A(f"buffer_load_dwordx4 {v(t0)}, {s(sd, 4)}, {s(sT0)} offen lds")
        for i in range(2):
            A(f"v_xor_b32 {v(t0)}, {64 * i}, {v(un)}")
            A(f"v_add_u32 {v(t0)}, {v(t0)}, {v(rowN)}")
            A(f"s_add_u32 m0, {s(sMv)}, {base + 32768 + i * 1024}")
            A(f"s_add_u32 {s(sT0)}, {s(nar[1])}, {8 * i * rs + nar[2]}")
            A(f"buffer_load_dwordx4 {v(t0)}, {s(nar[0], 4)}, {s(sT0)} offen lds")

    def addr(dst, basereg, sx, xconst, add_s, add_c):
        A(f"v_xor_b32 {v(dst)}, {s(sx)}, {v(basereg)}")
        if xconst:
            A(f"v_xor_b32 {v(dst)}, {xconst}, {v(dst)}")
        if add_s is not None:
            A(f"v_add_u32 {v(dst)}, {s(add_s)}, {v(dst)}")
        if add_c:
            A(f"v_add_u32 {v(dst)}, {add_c}, {v(dst)}")

    def consume(c):
        base = (c % 4) * 40960
        typ = 3 if (c >= 10 or c % 5 == 4) else 1
        bw, bn = (b1w, b1n) if typ == 1 else (b3w, b3n)
        for u in range(2):
            for jj in range(2):
                if typ == 1:
                    row, xw, xn = 16 * jj + 8 * u, 128 * u, 64 * u
                else:
                    row, xw, xn = 32 * u + 2 * jj, 128 * u + 64 * jj, 64 * u + 32 * jj
                off = 4 * u + 2 * jj
                if c < 10:
                    for t in range(2):
                        addr(t1, bw, sXk, xw ^ (32 * t), None, base)
                        addr(t0, bw, sXw, xw ^ (32 * t), None, base)
                        A(f"ds_read_b64_tr_b16 {fill_dst(('q', t, c), off)}, {v(t0)} offset:{row * 256}")
                        A(f"ds_read_b64_tr_b16 {fill_dst(('k', t, c), off)}, {v(t1)} offset:{16384 + row * 256}")
                    addr(t0, bn, sXn, xn, None, base)
                    A(f"ds_read_b64_tr_b16 {fill_dst(('v', 0, c), off)}, {v(t0)} offset:{32768 + row * 128}")
                else:
                    for t in range(4):
                        addr(t0, bw, sXo, xw ^ (32 * t), sOblk, base)
                        A(f"ds_read_b64_tr_b16 {fill_dst(('o', t, c - 10), off)}, {v(t0)} offset:{row * 256}")
                    addr(t0, bn, sXn, xn, None, base)
                    A(f"ds_read_b64_tr_b16 {fill_dst(('o', 4, c - 10), off)}, {v(t0)} offset:{32768 + row * 128}")

    for c in range(3):
        issue(c)
    for c in range(12):
        A(f"s_waitcnt vmcnt({min(20, 10 * (11 - c)) + (NINIT if FUSED and c in (7, 8) else 0)}) lgkmcnt(0)")
        A("s_barrier")
        if FUSED and c == 4:
            A("v_mov_b32 v154, 0")
            A(f"global_load_dwordx4 v[156:159], v154, {s(P_DBG, 2)} offset:{L.D_EPOCH} sc1")
        if FUSED and c == 6:
            lp, got = A.newlabel("par"), A.newlabel("gotpar")
            A("v_cmp_eq_u32 vcc, 0, v158")
            A(f"s_cbranch_vccz {got}")
            A.label(lp)
            A(f"global_load_dwordx4 v[156:159], v154, {s(P_DBG, 2)} offset:{L.D_EPOCH} sc1")
            A("s_waitcnt vmcnt(0)")
            A("v_cmp_eq_u32 vcc, 0, v158")
            retry(A, lp)
            A.label(got)
            A(f"v_readfirstlane_b32 {s(sE0)}, v156")
            A(f"v_readfirstlane_b32 {s(sE1)}, v157")
            A(f"v_readfirstlane_b32 {s(sPar)}, v158")
            A(f"s_and_b32 {s(sPar)}, {s(sPar)}, 8192")
            init_exchange()
        if c == (9 if FUSED else 0):
            A.c("arrive: exchange lines are initialised; one byte counter per compute die and group")
            skip = A.newlabel("arr")
            A(f"s_cmp_lg_u32 {s(sWv)}, 0")
            A(f"s_cbranch_scc1 {skip}")
            A(f"s_mov_b64 {s(sEx, 2)}, exec")
            A("s_mov_b64 exec, 1")
            A(f"s_getreg_b32 {s(sT0)}, hwreg(HW_REG_XCC_ID, 0, 3)")
            A(f"s_lshl_b32 {s(sT0)}, {s(sT0)}, 3")
            A(f"s_lshl_b64 {s(sT2, 2)}, 1, {s(sT0)}")
            A(f"s_lshl_b32 {s(sT0)}, {s(sX)}, 3")
            A(f"v_mov_b32 {v(t1)}, {s(sT0)}")
            A(f"v_mov_b32 {v(t2)}, {s(sT2)}")
            A(f"v_mov_b32 {v(t3)}, {s(sT3)}")
            A(f"global_atomic_add_x2 {v(t1)}, {v(t2, 2)}, {s(P_DBG, 2)} offset:{L.D_RINIT} sc1")
            A(f"s_mov_b64 exec, {s(sEx, 2)}")
            A.label(skip)
        if c + 3 < 12:
            issue(c + 3)
        consume(c)
    A("s_waitcnt lgkmcnt(0)")
    A("s_barrier")
    A(f"s_lshl_b32 {s(sT0)}, {s(sWv)}, 15")
    A(f"s_add_u32 {s(sT0)}, {s(sT0)}, {WST}")
    A(f"v_lshlrev_b32 {v(t0)}, 4, {v(l)}")
    A(f"v_add_u32 {v(t0)}, {s(sT0)}, {v(t0)}")
    for i in range(32):
        A(f"ds_write_b128 {v(t0)}, {v(HQ + 4 * i, 4)} offset:{1024 * i}")
    A("s_waitcnt lgkmcnt(0)")


def persistent(A):
    n, g, q, hf, t0, t1, l, mm = range(X, X + 8)
    lane_fields(A, n, g)
    A(f"v_and_b32 {v(l)}, 63, v0")
    A(f"v_lshrrev_b32 {v(t0)}, 2, {v(n)}")
    A(f"v_and_b32 {v(t1)}, 1, {v(n)}")
    A(f"v_lshl_add_u32 {v(q)}, {v(t0)}, 1, {v(t1)}")
    A(f"v_bfe_u32 {v(hf)}, {v(n)}, 1, 1")
    A(f"v_lshl_add_u32 {v(mm)}, {v(g)}, 1, {v(hf)}")
    A(f"v_mul_u32_u24 {v(vIdx)}, 0xaaaa, {v(hf)}")
    A(f"v_add_u32 {v(vIdx)}, 0x4444, {v(vIdx)}")
    for i in range(4):
        A(f"v_mov_b32 {v(vOnes + i)}, 0x3f803f80")
    A(f"v_lshlrev_b32 {v(t0)}, 4, {v(t1)}")
    A(f"v_mov_b32 {v(t1)}, 0x3f80")
    A(f"v_lshlrev_b32 {v(t0)}, {v(t0)}, {v(t1)}")
    A(f"v_bfe_u32 {v(t1)}, {v(n)}, 1, 2")
    for i in range(4):
        A(f"v_cmp_eq_u32 vcc, {i}, {v(t1)}")
        A(f"v_cndmask_b32 {v(vSel + i)}, 0, {v(t0)}, vcc")
    for r in (vPm, vVo, vVp):
        A(f"v_mov_b32 {v(r + 1)}, 0")
    A(f"v_lshlrev_b32 {v(aLin)}, 4, {v(l)}")
    A(f"s_lshl_b32 {s(sT0)}, {s(sWv)}, 15")
    A(f"s_add_u32 {s(sT0)}, {s(sT0)}, {WST}")
    A(f"v_add_u32 {v(aWst)}, {s(sT0)}, {v(aLin)}")
    A(f"v_lshlrev_b32 {v(aW1)}, 4, v0")
    A(f"v_lshlrev_b32 {v(aW4)}, 2, v0")
    A(f"v_lshlrev_b32 {v(t0)}, 7, {v(mm)}")
    A(f"v_lshl_add_u32 {v(t0)}, {v(q)}, 4, {v(t0)}")
    rolB, rolE = A.newlabel("roleB"), A.newlabel("roleE")
    A(f"s_mov_b32 {s(sOwn)}, 0")
    A(f"s_cmp_ge_u32 {s(sWv)}, 2")
    A(f"s_cbranch_scc1 {rolB}")
    A.c("waves 0,1: reduce line 32w + h (lines below 40), stage the keys")
    A(f"s_lshl_b32 {s(sT0)}, {s(sWv)}, 5")
    A(f"s_add_u32 {s(sT0)}, {s(sT0)}, {s(sH)}")
    A(f"s_cmp_lt_u32 {s(sT0)}, 40")
    A(f"s_cselect_b32 {s(sOwn)}, 1, 0")
    A(f"s_cselect_b32 {s(sT0)}, {s(sT0)}, 0")
    A(f"s_lshl_b32 {s(sT1)}, {s(sT0)}, 12")
    A(f"v_add_u32 {v(aR1)}, {s(sT1)}, {v(t0)}")
    A(f"s_lshl_b32 {s(sT1)}, {s(sT0)}, 7")
    A(f"v_and_b32 {v(t0)}, 1, {v(n)}")
    A(f"v_lshl_add_u32 {v(t0)}, {v(g)}, 1, {v(t0)}")
    A(f"v_lshlrev_b32 {v(t0)}, 4, {v(t0)}")
    A(f"v_bfe_u32 {v(t1)}, {v(n)}, 1, 2")
    A(f"v_lshl_add_u32 {v(t0)}, {v(t1)}, 2, {v(t0)}")
    A(f"v_add_u32 {v(aR2)}, {s(sT1)}, {v(t0)}")
    A(f"s_lshl_b32 {s(sT0)}, {s(sWv)}, 12")
    A(f"v_add_u32 {v(aR3)}, {s(sT0)}, {v(aLin)}")
    A(f"v_mov_b32 {v(aR4)}, 0")
    A(f"s_branch {rolE}")
    A.label(rolB)
    A.c("waves 2,3: stage fragments 2w', 2w'+1 and one half of the fifth fragment")
    A(f"s_and_b32 {s(sT2)}, {s(sWv)}, 1")
    A(f"s_lshl_b32 {s(sT0)}, {s(sT2)}, 11")
    A(f"v_add_u32 {v(aR1)}, {s(sT0)}, {v(t0)}")
    A(f"v_add_u32 {v(aR3)}, {s(sT0)}, {v(aLin)}")
    A(f"s_lshl_b32 {s(sT0)}, {s(sT2)}, 9")
    A(f"s_add_u32 {s(sT0)}, {s(sT0)}, 4096")
    A(f"v_lshlrev_b32 {v(t0)}, 3, {v(l)}")
    A(f"v_add_u32 {v(aR4)}, {s(sT0)}, {v(t0)}")
    A(f"v_lshrrev_b32 {v(t0)}, 5, {v(l)}")
    A(f"v_lshlrev_b32 {v(aR2)}, 8, {v(t0)}")
    A(f"v_bfe_u32 {v(t0)}, {v(l)}, 2, 1")
    A(f"v_lshl_add_u32 {v(aR2)}, {v(t0)}, 7, {v(aR2)}")
    A(f"v_bfe_u32 {v(t0)}, {v(l)}, 3, 2")
    A(f"v_lshl_add_u32 {v(aR2)}, {v(t0)}, 5, {v(aR2)}")
    A(f"v_and_b32 {v(t0)}, 3, {v(l)}")
    A(f"v_lshl_add_u32 {v(aR2)}, {v(t0)}, 3, {v(aR2)}")
    A(f"v_add_u32 {v(aR2)}, {s(sT0)}, {v(aR2)}")
    A.label(rolE)
    A(f"s_lshl_b32 {s(sT0)}, {s(sWv)}, 8")
    A.c("exchange write/read addresses")
    A(f"v_lshlrev_b32 {v(t0)}, 2, {v(g)}")
    A(f"v_lshl_add_u32 {v(t0)}, {v(n)}, 4, {v(t0)}")
    A(f"v_add_u32 {v(aVP)}, {s(sT0)}, {v(t0)}")
    A(f"s_lshl_b32 {s(sT0)}, {s(sWv)}, 9")
    A(f"v_add_u32 {v(t0)}, {s(sT0)}, {v(t0)}")
    A(f"v_add_u32 {v(aQW)}, {QX}, {v(t0)}")
    A(f"v_lshlrev_b32 {v(t0)}, 1, {v(t0)}")
    A(f"v_add_u32 {v(aKW)}, {KX}, {v(t0)}")
    A(f"v_lshrrev_b32 {v(t0)}, 1, {v(g)}")
    A(f"v_lshlrev_b32 {v(t0)}, 4, {v(t0)}")
    A(f"v_and_b32 {v(t1)}, 1, {v(g)}")
    A(f"v_lshl_add_u32 {v(t0)}, {v(t1)}, 2, {v(t0)}")
    A(f"v_lshrrev_b32 {v(t1)}, 2, {v(n)}")
    A(f"v_add_u32 {v(t0)}, {v(t0)}, {v(t1)}")
    A(f"v_and_b32 {v(t1)}, 1, {v(n)}")
    A(f"v_lshlrev_b32 {v(t1)}, 3, {v(t1)}")
    A(f"v_lshl_add_u32 {v(aQR)}, {v(t0)}, 4, {v(t1)}")
    A(f"v_add_u32 {v(aQR)}, {QX}, {v(aQR)}")
    A(f"v_and_b32 {v(t1)}, 3, {v(n)}")
    A(f"v_lshlrev_b32 {v(t1)}, 3, {v(t1)}")
    A(f"v_lshl_add_u32 {v(aKR)}, {v(t0)}, 5, {v(t1)}")
    A(f"s_lshl_b32 {s(sT0)}, {s(sX)}, 9")
    A(f"v_xor_b32 {v(aKR)}, {s(sT0)}, {v(aKR)}")
    A(f"v_add_u32 {v(aKR)}, {KX}, {v(aKR)}")
    A(f"v_and_b32 {v(t0)}, 7, {v(n)}")
    A(f"v_mul_u32_u24 {v(t0)}, {ORS}, {v(t0)}")
    A(f"v_lshl_add_u32 {v(t0)}, {v(g)}, 3, {v(t0)}")
    A(f"s_lshl_b32 {s(sT0)}, {s(sWv)}, 5")
    A(f"s_add_u32 {s(sT0)}, {s(sT0)}, {OX}")
    A(f"v_add_u32 {v(aOW)}, {s(sT0)}, {v(t0)}")
    A(f"v_mul_u32_u24 {v(t0)}, {ORS}, {v(q)}")
    A(f"v_lshl_add_u32 {v(t0)}, {v(mm)}, 4, {v(t0)}")
    A(f"v_add_u32 {v(aOR)}, {OX}, {v(t0)}")
    partial_addrs(A, n, g, t0, t1, aP4, aP1)
    A.c("initial memory: gather A_mem0 into the staged fragment image")
    srd(A, ST, P_MEM0, 8 * 1280)
    d = X + 8
    A(f"v_mul_u32_u24 {v(t0)}, 1280, {v(q)}")
    A(f"v_lshl_add_u32 {v(t1)}, {v(mm)}, 2, {v(t0)}")
    A(f"v_lshl_add_u32 {v(t0)}, {v(mm)}, 4, {v(t0)}")
    A(f"s_mul_i32 {s(sT0)}, {s(sX)}, 640")
    A(f"s_sub_u32 {s(sT1)}, 640, {s(sT0)}")
    A(f"s_lshl_b32 {s(sT2)}, {s(sWv)}, 7")
    for k, sb in enumerate((sT0, sT1)):
        A(f"s_add_u32 {s(sT3)}, {s(sb)}, {s(sT2)}")
        for tau in range(4):
            A(f"buffer_load_dword {v(d + 8 * k + tau)}, {v(t1)}, {s(ST, 4)}, {s(sT3)} offen offset:{32 * tau}")
        A(f"buffer_load_dwordx4 {v(d + 8 * k + 4, 4)}, {v(t0)}, {s(ST, 4)}, {s(sb)} offen offset:512")
    A("s_waitcnt vmcnt(0)")
    for k in range(2):
        A(f"ds_write_b128 {v(aW1)}, {v(d + 8 * k, 4)} offset:{MEM + 5120 * k}")
        A(f"ds_write_b128 {v(aLin)}, {v(d + 8 * k + 4, 4)} offset:{MEM + 5120 * k + 4096}")


def step_bases(A):
    A(f"s_lshl_b32 {s(sT0)}, {s(sH)}, 13")
    A(f"s_add_u32 {s(sKT0)}, {s(sT0)}, {L.KT}")
    A(f"s_add_u32 {s(sKT1)}, {s(sKT0)}, 4096")
    A(f"s_lshl_b32 {s(sW1k)}, {s(sWv)}, 10")
    A(f"s_lshl_b32 {s(sT1)}, {s(sX)}, 12")
    A(f"s_add_u32 {s(sT0)}, {s(sT0)}, {s(sT1)}")
    A(f"s_add_u32 {s(sVTo)}, {s(sT0)}, {L.VT}")
    A(f"s_xor_b32 {s(sVTp)}, {s(sVTo)}, 4096")
    A(f"s_lshl_b32 {s(sT0)}, {s(sH)}, 11")
    A(f"s_lshl_b32 {s(sT1)}, {s(sX)}, 8")
    A(f"s_add_u32 {s(sKM)}, {s(sT0)}, {s(sT1)}")
    A(f"s_add_u32 {s(sKM)}, {s(sKM)}, {L.KM - QX}")
    A(f"s_lshl_b32 {s(sT1)}, {s(sX)}, 10")
    A(f"s_add_u32 {s(sT0)}, {s(sT0)}, {s(sT1)}")
    A(f"s_add_u32 {s(sVM)}, {s(sT0)}, {L.VM}")
    A(f"s_mov_b32 {s(sStep)}, 0\ns_mov_b32 {s(sTag)}, 0\ns_mov_b32 {s(sTagV)}, 0")
    A(f"s_mov_b32 {s(sVXbw)}, {s(sVXw)}\ns_mov_b32 {s(sVXbr)}, {s(sVXr)}")
    A(f"s_add_u32 {s(SW2)}, {s(SW)}, {L.EX2}")
    A(f"s_addc_u32 {s(SW2 + 1)}, {s(SW + 1)}, 0")
    A(f"s_mov_b32 {s(SW2 + 2)}, {L.WS_BYTES - L.EX2}")
    A(f"s_mov_b32 {s(SW2 + 3)}, 0x20000")
    A(f"s_cmp_ge_u32 {s(sWv)}, 2")
    A(f"s_cselect_b64 {s(sEx, 2)}, -1, 0")
    A(f"s_mov_b32 {s(sCs)}, 0x3e0293ee")


def kv_m0(A, i):
    A(f"s_add_u32 m0, {s(sW1k)}, {(KTL, KTL + 4096, MEM, MEM + 4096)[i]}")


def kv_dma(A, i):
    sb = (sKT0, sKT1, sVTo, sVTp)[i]
    A(f"buffer_load_dwordx4 {v(aW1)}, {s(SW, 4)}, {s(sb)} offen sc1 lds")
    A(f"s_add_u32 {s(sb)}, {s(sb)}, {32 * 8192}")


def vt_read(A):
    A(f"ds_read_b128 {v(vVt, 4)}, {v(aW1)} offset:{MEM}")
    A(f"ds_read_b128 {v(vVt + 4, 4)}, {v(aW1)} offset:{MEM + 4096}")


def zero_acc(A):
    for i in range(20):
        A(f"v_mov_b32 {v(U + i)}, 0")


def w_read(A, i, hh):
    A(f"ds_read_b128 {v(BUF[i % 6] + 4 * hh, 4)}, {v(aWst)} offset:{2048 * i + 1024 * hh}")


def q_stage(A):
    for i in range(6):
        for hh in range(2):
            w_read(A, i, hh)


def smf(A, d, av, b):
    A(f"v_smfmac_f32_16x16x64_bf16 {v(d, 4)}, {v(av, 4)}, {b}, {v(vIdx)}")


def mf32(A, d, av, bv, c=None):
    A(f"v_mfma_f32_16x16x32_bf16 {v(d, 4)}, {v(av, 4)}, {v(bv, 4)}, {'0' if c is None else v(c, 4)}")


def mf16(A, d, av, bv):
    A(f"v_mfma_f32_16x16x16_bf16 {v(d, 4)}, {v(av, 2)}, {v(bv, 2)}, {v(d, 4)}")


def add0(A, acc):
    A(f"v_add_f32 {v(acc)}, {v(acc)}, {v(acc + 2)}")


def add1(A, acc):
    A(f"v_add_f32 {v(acc + 1)}, {v(acc + 1)}, {v(acc + 3)}")


def cvt(A, dst, acc):
    A(f"v_cvt_pk_bf16_f32 {v(dst)}, {v(acc)}, {v(acc + 1)}")


def publish_v(A):
    A(f"buffer_store_dword {v(vVo)}, {v(aVP)}, {s(SW, 4)}, {s(sVM)} offen sc1")


def publish_k(A, src):
    A(f"buffer_store_dword {v(src)}, {v(aQW)}, {s(SW, 4)}, {s(sKM)} offen sc1")


def kv_ready(A, B, ahead, t):
    sl, back = B.newlabel("kvw"), A.newlabel("kvok")
    A(f"s_add_u32 {s(sT0)}, {s(sStep)}, {ahead}")
    A(f"s_cmp_le_u32 {s(sKnown)}, {s(sT0)}")
    A(f"s_cbranch_scc1 {sl}")
    A.label(back)
    B.label(sl)
    B(f"v_bfe_u32 {v(t + 2)}, {v(aLin)}, 4, 1")
    B(f"v_lshlrev_b32 {v(t + 2)}, 3, {v(t + 2)}")
    B(f"v_bfe_u32 {v(t + 3)}, {v(aLin)}, 5, 1")
    B(f"v_lshl_add_u32 {v(t + 2)}, {v(t + 3)}, 9, {v(t + 2)}")
    B(f"s_lshl_b32 {s(sT1)}, {s(sH)}, 4")
    B(f"s_add_u32 {s(sT1)}, {s(sT1)}, {L.F_QKV + 512}")
    lp = B.newlabel("kvp")
    B.label(lp)
    B(f"buffer_load_dwordx2 {v(t, 2)}, {v(t + 2)}, {s(SW, 4)}, {s(sT1)} offen sc1")
    B("s_waitcnt vmcnt(0)")
    B(f"v_subrev_u32 {v(t)}, {s(sE0)}, {v(t)}")
    B(f"v_xor_b32 {v(t + 1)}, {s(sE1)}, {v(t + 1)}")
    B(f"v_lshrrev_b32 {v(t + 3)}, 8, {v(t)}")
    B(f"v_or_b32 {v(t + 1)}, {v(t + 1)}, {v(t + 3)}")
    B(f"v_cmp_eq_u32 vcc, 0, {v(t + 1)}")
    B(f"v_cndmask_b32 {v(t)}, 0, {v(t)}, vcc")
    B(f"v_cmp_ge_u32 vcc, {s(sT0)}, {v(t)}")
    retry(B, lp)
    B(f"v_readlane_b32 {s(sKnown)}, {v(t)}, 0")
    for i in range(1, 4):
        B(f"v_readlane_b32 {s(sT1)}, {v(t)}, {i}")
        B(f"s_min_u32 {s(sKnown)}, {s(sKnown)}, {s(sT1)}")
    B(f"s_branch {back}")


def rec_flag(A, progress, t):
    A(f"s_add_u32 {s(sT0)}, {s(sE0)}, {progress}")
    A(f"v_mov_b32 {v(t)}, {s(sT0)}")
    A(f"v_mov_b32 {v(t + 1)}, {s(sE1)}")


def rec_flag_store(A, t):
    A(f"s_mov_b64 exec, {s(sFM, 2)}")
    A(f"buffer_store_dwordx2 {v(t, 2)}, off, {s(SW, 4)}, {s(sRF)} sc1")
    A("s_mov_b64 exec, -1")


def delay(A, n):
    for _ in range(n // 4):
        A("s_nop 15")
    if n % 4:
        A(f"s_nop {4 * (n % 4) - 1}")


def step_loop(A, lf, hooks):
    QA, KA, VA = U, U + 8, U + 16
    S0, S1, SM = U, U + 4, T
    O0, O1, LA = U + 8, U + 12, U + 20
    LM, RM, H1 = X + 20, X + 30, X + 12
    m, tt = T2a, T2b
    top, entry, done = A.newlabel("step"), A.newlabel("entry"), A.newlabel("done")
    slow = Asm()
    slow.uid = A.uid + 500

    def nop(k):
        A(f"s_nop {k}")

    def q(t, f):
        smf(A, QA + 4 * t, X + 4 * f, operand(("q", t, f)))

    def k(t, f):
        smf(A, KA + 4 * t, X + 4 * f, operand(("k", t, f)))

    def vv(f):
        smf(A, VA, X + 4 * f, operand(("v", 0, f)))

    def m_load(B, dst, sb, i, sw=SW):
        if i < 2:
            B(f"buffer_load_dwordx4 {v(dst + 4 * i, 4)}, {v(aR1)}, {s(sw, 4)}, {s(sb)} offen offset:{1024 * i} sc1")
        else:
            B(f"buffer_load_dwordx2 {v(dst + 8, 2)}, {v(aR2)}, {s(sw, 4)}, {s(sb)} offen sc1")

    def m_loads(B, dst, sb, sw=SW):
        for i in range(3):
            m_load(B, dst, sb, i, sw)

    def m_write(B, src, i, off):
        if i < 2:
            B(f"ds_write_b128 {v(aR3)}, {v(src + 4 * i, 4)} offset:{off + 1024 * i}")
        else:
            B(f"ds_write_b64 {v(aR4)}, {v(src + 8, 2)} offset:{off}")

    def m_max(B, src, i):
        if i == 0:
            B(f"v_max3_u32 {v(m)}, {v(src)}, {v(src + 1)}, {v(src + 2)}")
        elif i < 4:
            B(f"v_max3_u32 {v(m)}, {v(m)}, {v(src + 1 + 2 * i)}, {v(src + 2 + 2 * i)}")
        else:
            B(f"v_max_u32 {v(m)}, {v(m)}, {v(src + 9)}")

    def kt_read(i):
        A(f"ds_read_b128 {v(Y + 4 * i, 4)}, {v(aLin)} offset:{KTL + 1024 * i}")

    def q_tr(i):
        A(f"ds_read_b64_tr_b16 {v(Z + 2 * i, 2)}, {v(aQR)} offset:{(32 * (i >> 1) + 8 * (i & 1)) * 16}")

    def k_tr(i):
        A(f"ds_read_b64_tr_b16 {v(Y + 2 * i, 2)}, {v(aKR)} offset:{(32 * (i >> 1) + 8 * (i & 1)) * 32}")

    def vx_load(B):
        B(f"buffer_load_dword {v(vVp)}, {v(aW4)}, {s(SW, 4)}, {s(sVXr)} offen sc1")

    A(f"s_branch {entry}")
    A.label(top)
    delay(A, D2)
    phase(A, "pre-h2")
    def local_round(B, extra):
        for i in range(3):
            B(f"s_waitcnt vmcnt({2 - i + extra})")
            m_write(B, LM, i, MEM)
        for i in range(5):
            m_max(B, LM, i)
        B(f"v_cmp_eq_u32 vcc, -1, {v(m)}")

    m_loads(A, LM, sML)
    if B5:
        A("s_barrier")
    delay(A, H2P)
    m_loads(A, RM, sML)
    local_round(A, 3)
    sl, lok = slow.newlabel("h2l"), A.newlabel("lok")
    A(f"s_cbranch_vccnz {sl}" if not NOWAIT else "s_nop 0")
    slow.label(sl)
    slow("s_mov_b64 exec, vcc")
    lp = slow.newlabel("h2lp")
    slow.label(lp)
    count(slow, 0)
    m_loads(slow, RM, sML)
    slow("s_mov_b64 exec, -1")
    slow("s_waitcnt vmcnt(3)")
    for i in range(5):
        m_max(slow, RM, i)
    slow(f"v_cmp_eq_u32 vcc, -1, {v(m)}")
    masked_retry(slow, lp)
    for i in range(3):
        m_write(slow, RM, i, MEM)
    slow(f"s_branch {lok}")
    A.label(lok)
    m_loads(A, RM, sMRr)
    phase(A, "h2 local")
    A.label(entry)
    A("s_waitcnt lgkmcnt(0)")
    A("s_barrier")
    phase(A, "B0a")
    for f in range(5):
        A(f"ds_read_b128 {v(X + 4 * f, 4)}, {v(aLin)} offset:{MEM + 1024 * f}")
    pend = [("m", f) for f in range(5)]

    def need(x):
        if x in pend:
            n = len(pend) - 1 - max(i for i, y in enumerate(pend) if y == x)
            A(f"s_waitcnt lgkmcnt({n})")
            del pend[:len(pend) - n]

    def stream(i, hh):
        w_read(A, i, hh)
        pend.append(("w", i))

    slot = 0
    for f in range(5):
        for kind, tl in (("q", 0), ("q", 1), ("v", 0)):
            need(("m", f))
            if (kind, tl, f) in LDSF:
                need(("w", LDSF.index((kind, tl, f))))
            q(tl, f) if kind == "q" else vv(f)
            if 1 <= slot <= 12:
                stream(6 + (slot - 1) // 2, (slot - 1) & 1)
            if R2 and slot == R2:
                A(f"s_mov_b64 exec, {s(sEx, 2)}")
                m_loads(A, LM, sMRr, SW2)
                A("s_mov_b64 exec, -1")
            slot += 1
    A("s_waitcnt lgkmcnt(0)")
    rolB, join = A.newlabel("stB"), A.newlabel("join")
    k(0, 0)
    A(f"s_cmp_ge_u32 {s(sWv)}, 2")
    A(f"s_cbranch_scc1 {rolB}")
    for i in range(4):
        k(0, 1 + i)
    k(1, 0)
    A(f"s_branch {join}")
    A.label(rolB)
    A(f"s_waitcnt vmcnt({3 if R2 else 0})")
    for i in range(4):
        k(0, 1 + i)
        if i < 3:
            m_write(A, RM, i, MEM + 5120)
        m_max(A, RM, i)
    k(1, 0)
    m_max(A, RM, 4)
    A(f"v_cmp_eq_u32 vcc, -1, {v(m)}")
    sl = slow.newlabel("h2r")
    A(f"s_cbranch_vccnz {sl}" if not NOWAIT else "s_nop 0")
    slow.label(sl)
    if R2:
        slow("s_waitcnt vmcnt(0)")
        for i in range(3):
            m_write(slow, LM, i, MEM + 5120)
        for i in range(5):
            m_max(slow, LM, i)
        slow(f"v_cmp_eq_u32 vcc, -1, {v(m)}")
        slow(f"s_cbranch_vccz {join}")
        sl = slow.newlabel("h2r2")
        slow.label(sl)
    count(slow, 1)
    m_loads(slow, RM, sMRr)
    slow("s_waitcnt vmcnt(0)")
    for i in range(3):
        m_write(slow, RM, i, MEM + 5120)
    for i in range(5):
        m_max(slow, RM, i)
    slow(f"v_cmp_eq_u32 vcc, -1, {v(m)}")
    retry(slow, sl)
    slow(f"s_branch {join}")
    A.label(join)
    phase(A, "local+h2r")
    A("s_waitcnt lgkmcnt(0)")
    A("s_barrier")
    phase(A, "B0b")
    if R2:
        A("s_waitcnt vmcnt(0)")
    A(f"ds_read_b128 {v(X + 20, 4)}, {v(aLin)} offset:{MEM + 5120}")
    for f in range(1, 5):
        k(1, f)
        A(f"ds_read_b128 {v(X + 20 + 4 * f, 4)}, {v(aLin)} offset:{MEM + 5120 + 1024 * f}")
    pend[:] = [("m", f) for f in range(5, 10)]
    for f in range(5, 10):
        need(("m", f))
        vv(f)
        if f > 5:
            stream(12 + (f - 6) // 2, (f - 6) & 1)
    q(0, 5); stream(14, 0); nop(1)
    q(0, 6); stream(14, 1); nop(0); add0(A, VA); add1(A, VA)
    q(0, 7); stream(15, 0); cvt(A, vVo, VA); A(f"v_and_or_b32 {v(m)}, {v(vVo)}, -2, {s(sTagV)}")
    q(0, 8); A(f"buffer_store_dword {v(m)}, {v(aW4)}, {s(SW, 4)}, {s(sVXw)} offen sc1")
    q(0, 9); stream(15, 1)
    if V2:
        A(f"buffer_store_dword {v(m)}, {v(aW4)}, {s(SW2, 4)}, {s(sVXw)} offen sc1")
    need(("w", 12))
    q(1, 5); nop(1)
    need(("w", 13))
    q(1, 6); nop(1)
    need(("w", 14))
    q(1, 7); kt_read(0); add0(A, QA)
    pend.append(("kt", 0))
    need(("w", 15))
    q(1, 8); kt_read(1); add1(A, QA)
    q(1, 9); kt_read(2); cvt(A, QA, QA)
    k(0, 5); A(f"ds_write_b32 {v(aQW)}, {v(QA)}"); nop(1)
    k(0, 6); kt_read(3); nop(0)
    k(0, 7); kt_read(4); add0(A, QA + 4)
    k(0, 8); kt_read(5); add1(A, QA + 4)
    k(0, 9); kt_read(6); cvt(A, QA + 4, QA + 4)
    k(1, 5); A(f"ds_write_b32 {v(aQW)}, {v(QA + 4)} offset:256"); nop(1)
    k(1, 6); kt_read(7); nop(0)
    k(1, 7); add0(A, KA)
    k(1, 8); add1(A, KA)
    A("s_waitcnt lgkmcnt(0)")
    A("s_barrier")
    phase(A, "B1")
    k(1, 9)
    for i in range(8):
        q_tr(i)
    if VXP == 0:
        vx_load(A)
    cvt(A, KA, KA)
    add0(A, KA + 4)
    add1(A, KA + 4)
    cvt(A, KA + 1, KA + 4)
    A(f"ds_write2_b32 {v(aKW)}, {v(KA)}, {v(KA + 1)} offset0:0 offset1:128")
    A("s_waitcnt lgkmcnt(7)")
    mf32(A, S0, Y, Z)
    mf32(A, S1, Y + 4, Z)
    A("s_waitcnt lgkmcnt(5)")
    mf32(A, S0, Y + 8, Z + 4, S0)
    if VXP == 1:
        vx_load(A)
    mf32(A, S1, Y + 12, Z + 4, S1)
    A(f"s_cmp_eq_u32 {s(sStep)}, {LAST}")
    A(f"s_cbranch_scc1 {done}")
    if FUSED:
        kv_ready(A, slow, 1, X)
    A("s_waitcnt lgkmcnt(0)")
    A("s_barrier")
    phase(A, "remote qkv+B2")
    k_tr(0); k_tr(1)
    kv_m0(A, 0)
    mf32(A, S0, Y + 16, Z + 8, S0)
    k_tr(2); k_tr(3)
    mf32(A, S1, Y + 20, Z + 8, S1)
    k_tr(4); k_tr(5)
    mf32(A, S0, Y + 24, Z + 12, S0)
    k_tr(6); k_tr(7)
    mf32(A, S1, Y + 28, Z + 12, S1)
    if VXP == 2:
        vx_load(A)
    if V2:
        A(f"buffer_load_dword {v(vV2)}, {v(aW4)}, {s(SW2, 4)}, {s(sVXr)} offen sc1")
    kv_dma(A, 0)
    for ks in range(4):
        A(f"s_waitcnt lgkmcnt({6 - 2 * ks})")
        mf32(A, SM, Y + 4 * ks, Z + 4 * ks, None if ks == 0 else SM)
        if ks == 0:
            kv_m0(A, 1)
            A(f"v_max3_f32 {v(m)}, {v(S0)}, {v(S0 + 1)}, {v(S0 + 2)}")
            if FUSED:
                rec_flag(A, s(sStep), X)
        if ks == 1:
            publish_v(A)
            A(f"v_max3_f32 {v(m)}, {v(m)}, {v(S0 + 3)}, {v(S1)}")
        if ks == 2:
            publish_k(A, KA)
            A(f"v_max3_f32 {v(m)}, {v(m)}, {v(S1 + 1)}, {v(S1 + 2)}")
    kv_dma(A, 1)
    if FUSED:
        rec_flag_store(A, X)
    kv_m0(A, 2)
    for i in range(5):
        A(f"v_mov_b32 {v(OPACC[0] + i)}, 0")
    phase(A, "Smm")
    A(f"v_max3_f32 {v(tt)}, {v(S1 + 3)}, {v(SM)}, {v(SM + 1)}")
    A(f"v_max_f32 {v(m)}, {v(m)}, {v(tt)}")
    A(f"v_mov_b32 {v(tt)}, {v(m)}")
    A(f"v_permlane32_swap_b32 {v(m)}, {v(tt)}")
    A(f"v_max_f32 {v(m)}, {v(m)}, {v(tt)}")
    A(f"v_mov_b32 {v(tt)}, {v(m)}")
    A(f"v_permlane16_swap_b32 {v(m)}, {v(tt)}")
    A(f"v_max_f32 {v(m)}, {v(m)}, {v(tt)}")
    A(f"v_mul_f32 {v(m)}, {s(sCs)}, {v(m)}")
    vals = [S0 + i for i in range(8)] + [SM, SM + 1]
    for i, r in enumerate(vals):
        A(f"v_fma_f32 {v(r)}, {v(r)}, {s(sCs)}, -{v(m)}")
        if i:
            A(f"v_exp_f32 {v(vals[i - 1])}, {v(vals[i - 1])}")
        if EDMA and i == 1:
            kv_dma(A, 2)
            kv_m0(A, 3)
        if EDMA and i == 7:
            kv_dma(A, 3)
    A(f"v_exp_f32 {v(vals[9])}, {v(vals[9])}")
    for i in range(4):
        A(f"v_cvt_pk_bf16_f32 {v(S0 + i)}, {v(S0 + 2 * i)}, {v(S0 + 2 * i + 1)}")
    A(f"v_cvt_pk_bf16_f32 {v(vPm)}, {v(SM)}, {v(SM + 1)}")
    phase(A, "exp")
    zs = [OPACC[0] + i for i in range(5, 20)]

    def zero(n):
        for _ in range(n):
            if zs:
                A(f"v_mov_b32 {v(zs.pop(0))}, 0")

    mf32(A, LA, vOnes, S0)
    if not EDMA:
        kv_dma(A, 2)
    A(f"s_waitcnt vmcnt({(6 if EDMA else 5) + (1 if V2 else 0) + FUSED})")
    A(f"v_bitop3_b32 {v(tt)}, {v(vVp)}, 1, {s(sTagV)} bitop3:0x48")
    mf32(A, O0, vVt, S0)
    A(f"v_cmp_ne_u32 vcc, 0, {v(tt)}")
    zero(1)
    mf32(A, O1, vVt + 4, S0)
    if not EDMA:
        kv_m0(A, 3)
    zero(1)
    mf16(A, LA, vOnes, vPm)
    zero(2)
    mf16(A, O0, vVo, vPm)
    sl, vok = slow.newlabel("vx"), A.newlabel("vok")
    A(f"s_cbranch_vccnz {sl}" if not NOWAIT else "s_nop 0")
    slow.label(sl)
    if V2:
        slow(f"s_waitcnt vmcnt({(6 if EDMA else 5) + FUSED})")
        slow(f"v_mov_b32 {v(vVp)}, {v(vV2)}")
        slow(f"v_bitop3_b32 {v(tt)}, {v(vV2)}, 1, {s(sTagV)} bitop3:0x48")
        slow(f"v_cmp_ne_u32 vcc, 0, {v(tt)}")
        slow(f"s_cbranch_vccz {vok}")
        sl = slow.newlabel("vx2")
        slow.label(sl)
    count(slow, 2)
    vx_load(slow)
    slow("s_waitcnt vmcnt(0)")
    slow(f"v_bitop3_b32 {v(tt)}, {v(vVp)}, 1, {s(sTagV)} bitop3:0x48")
    slow(f"v_cmp_ne_u32 vcc, 0, {v(tt)}")
    retry(slow, sl)
    slow(f"s_branch {vok}")
    A.label(vok)
    mf16(A, O1, vVp, vPm)
    if not EDMA:
        kv_dma(A, 3)
    phase(A, "attn+vx")
    A(f"v_rcp_f32 {v(m)}, {v(LA)}")
    for i in range(4):
        A(f"v_mul_f32 {v(O0 + i)}, {v(O0 + i)}, {v(m)}")
    cvt(A, O0, O0)
    cvt(A, O0 + 1, O0 + 2)
    for i in range(4):
        A(f"v_mul_f32 {v(O1 + i)}, {v(O1 + i)}, {v(m)}")
    cvt(A, O1, O1)
    cvt(A, O1 + 1, O1 + 2)
    A(f"ds_write2_b64 {v(aOW)}, {v(O0, 2)}, {v(O1, 2)} offset0:0 offset1:16")
    zero(20)
    A("s_waitcnt lgkmcnt(0)")
    A("s_barrier")
    A(f"ds_read_b128 {v(vVt, 4)}, {v(aOR)}")
    A(f"ds_read_b128 {v(vVt + 4, 4)}, {v(aOR)} offset:128")
    phase(A, "norm+B3")

    def op(t, kf):
        smf(A, OPACC[t], vVt + 4 * kf, operand(("o", t, kf)))

    def tag(r):
        A(f"v_and_or_b32 {v(r)}, {v(r)}, -2, {s(sTag)}")

    A("s_waitcnt lgkmcnt(1)")
    op(0, 0)
    A("s_waitcnt lgkmcnt(0)")
    op(0, 1)
    op(1, 0); nop(1)
    op(1, 1); nop(2)
    op(2, 0); add0(A, OPACC[0])
    op(2, 1); add1(A, OPACC[0])
    op(3, 0); cvt(A, OPQ, OPACC[0])
    op(3, 1); add0(A, OPACC[1])
    op(4, 0); add1(A, OPACC[1])
    op(4, 1); cvt(A, OPQ + 1, OPACC[1])
    add0(A, OPACC[2]); add1(A, OPACC[2]); tag(OPQ); cvt(A, OPQ + 2, OPACC[2])
    add0(A, OPACC[3]); add1(A, OPACC[3]); tag(OPQ + 2); cvt(A, OPQ + 3, OPACC[3])
    A(f"buffer_store_dwordx4 {v(OPQ, 4)}, {v(aP4)}, {s(SW, 4)}, {s(sPL)} offen {lf}")
    add0(A, OPACC[4]); add1(A, OPACC[4]); cvt(A, OPQ + 4, OPACC[4]); tag(OPQ + 4)
    A(f"buffer_store_dword {v(OPQ + 4)}, {v(aP1)}, {s(SW, 4)}, {s(sPL)} offen {lf}")
    phase(A, "outproj")
    phase_fold(A)
    noown = A.newlabel("noown")

    def counters():
        for r in (sKM, sVM):
            A(f"s_add_u32 {s(r)}, {s(r)}, {32 * 2048}")
        for r in (sMRw, sMRr):
            A(f"s_add_u32 {s(r)}, {s(r)}, 16384")
        A(f"s_add_u32 {s(sStep)}, {s(sStep)}, 1")
        A(f"s_and_b32 {s(sT1)}, {s(sStep)}, 3")
        A(f"s_lshl_b32 {s(sT1)}, {s(sT1)}, 14")
        A(f"s_add_u32 {s(sML)}, {s(sMLb)}, {s(sT1)}")
        A(f"s_xor_b32 {s(sT1)}, {s(sT1)}, 32768")
        A(f"s_add_u32 {s(sMLp)}, {s(sMLb)}, {s(sT1)}")
        A(f"s_bfe_u32 {s(sTagV)}, {s(sStep)}, 0x10004")
        A(f"s_and_b32 {s(sT1)}, {s(sStep)}, 7")
        A(f"s_lshl_b32 {s(sT1)}, {s(sT1)}, 10")
        A(f"s_and_b32 {s(sT0)}, {s(sStep)}, 8")
        A(f"s_lshl_b32 {s(sT0)}, {s(sT0)}, 11")
        A(f"s_or_b32 {s(sT0)}, {s(sT0)}, {s(sT1)}")
        A(f"s_add_u32 {s(sVXw)}, {s(sVXbw)}, {s(sT0)}")
        A(f"s_add_u32 {s(sVXr)}, {s(sVXbr)}, {s(sT0)}")

    def h1_loads(B):
        for i in range(4):
            B(f"buffer_load_dwordx4 {v(H1 + 4 * i, 4)}, {v(aR1)}, {s(SW, 4)}, {s(sPL)} offen offset:{1024 * i} sc1")

    def h1_round(B, extra):
        tmp = [T2a, T2b, X + 8, X + 9]
        for i in range(4):
            B(f"s_waitcnt vmcnt({3 - i + extra})")
            B(f"v_bitop3_b32 {v(tmp[i])}, {v(H1 + 4 * i)}, {v(H1 + 4 * i + 2)}, {s(sTag)} bitop3:0x7e")
            if lf:
                B(f"v_bitop3_b32 {v(X + 11)}, {v(H1 + 4 * i + 1)}, {v(H1 + 4 * i + 3)}, {s(sTag)} bitop3:0x7e")
                B(f"v_and_or_b32 {v(tmp[i])}, {v(X + 11)}, {s(sWv)}, {v(tmp[i])}")
            mf32(B, T, H1 + 4 * i, vSel, None if i == 0 else T)
        B(f"v_or3_b32 {v(tmp[0])}, {v(tmp[0])}, {v(tmp[1])}, {v(tmp[2])}")
        B(f"v_bitop3_b32 {v(tmp[0])}, {v(tmp[0])}, {v(tmp[3])}, 1 bitop3:0xa8")
        B(f"v_cmp_ne_u32 vcc, 0, {v(tmp[0])}")

    A(f"s_cmp_eq_u32 {s(sOwn)}, 0")
    A(f"s_cbranch_scc1 {noown}")
    counters()
    delay(A, D1)
    phase(A, "pre-h1")
    h1_loads(A)
    A(f"s_waitcnt vmcnt({8 if TRACE else 6})")
    vt_read(A)
    q_stage(A)
    if H1P:
        delay(A, H1P - 1)
        h1_loads(A)
    zero_acc(A)
    A(f"v_mov_b32 {v(X + 10)}, -1")
    h1_round(A, 4 if H1P else 0)
    sl, hok = slow.newlabel("h1"), A.newlabel("hok")
    A(f"s_cbranch_vccnz {sl}" if not NOWAIT else "s_nop 0")
    slow.label(sl)
    slow("s_mov_b64 exec, vcc")
    if not H1P:
        h1_loads(slow)
        delay(slow, PIPE)
    lp = slow.newlabel("h1p")
    slow.label(lp)
    count(slow, 3)
    h1_loads(slow)
    slow("s_mov_b64 exec, -1")
    h1_round(slow, 4)
    masked_retry(slow, lp)
    slow(f"s_branch {hok}")
    A.label(hok)
    phase(A, "h1 loads")
    add0(A, T)
    add1(A, T)
    cvt(A, T, T)
    A(f"v_min_u32 {v(T)}, -2, {v(T)}")
    A(f"buffer_store_dword {v(T)}, {v(aR2)}, {s(SW, 4)}, {s(sML)} offen {lf}")
    if not B5:
        A(f"buffer_store_dword {v(T)}, {v(aR2)}, {s(SW, 4)}, {s(sMRw)} offen sc1")
        if R2:
            A(f"buffer_store_dword {v(T)}, {v(aR2)}, {s(SW2, 4)}, {s(sMRw)} offen sc1")
    phase(A, "hop1")
    A("s_waitcnt lgkmcnt(0)")
    A("s_barrier")
    A(f"s_and_b32 {s(sTag)}, {s(sStep)}, 1")
    if B5:
        A("s_barrier")
        A(f"buffer_store_dword {v(T)}, {v(aR2)}, {s(SW, 4)}, {s(sMRw)} offen sc1")
        if R2:
            A(f"buffer_store_dword {v(T)}, {v(aR2)}, {s(SW2, 4)}, {s(sMRw)} offen sc1")
    A(f"buffer_store_dword {v(X + 10)}, {v(aR2)}, {s(SW, 4)}, {s(sMLp)} offen {lf}")
    A(f"s_waitcnt vmcnt({4 if R2 else 3})")
    A(f"s_branch {entry}")
    A.label(noown)
    A(f"s_waitcnt vmcnt({4 if TRACE else 2})")
    vt_read(A)
    q_stage(A)
    zero_acc(A)
    counters()
    A(f"s_and_b32 {s(sTag)}, {s(sStep)}, 1")
    A("s_waitcnt lgkmcnt(0)")
    A(f"s_cmp_ge_u32 {s(sWv)}, 2")
    A("s_barrier")
    A(f"s_cbranch_scc1 {top}")
    if B5:
        A("s_barrier")
    A(f"s_branch {entry}")
    A.lines += slow.lines
    A.uid = slow.uid
    A.label(done)
    publish_v(A)
    publish_k(A, KA)


def stamp(A, i):
    if i in (1, 2):
        A(f"s_memrealtime {s(88 + 2 * i, 2)}")
    A(f"s_memtime {s(sTime + 2 * i, 2)}")
    A("s_waitcnt lgkmcnt(0)")


def body(A, fast=True, diag=False, hooks=None, first_wait=None, load_par=False):
    lf = "" if fast else "sc1"
    if diag:
        stamp(A, 0)
    A(f"s_load_dwordx2 {s(P_MEM0, 2)}, s[0:1], {L.K_MEM0}")
    A(f"s_load_dwordx2 {s(P_WQ, 2)}, s[0:1], {L.K_WQ}")
    A(f"s_load_dwordx4 {s(P_WK, 4)}, s[0:1], {L.K_WK}")
    A(f"s_load_dwordx2 {s(P_WO, 2)}, s[0:1], {L.K_WO}")
    A(f"s_load_dwordx2 {s(P_DBG, 2)}, s[0:1], {L.K_DBG}")
    A(f"s_load_dwordx2 {s(P_WS, 2)}, s[0:1], {L.K_WS}")
    A(f"v_lshrrev_b32 v1, 6, v0")
    A(f"v_readfirstlane_b32 {s(sWv)}, v1")
    A(f"s_mov_b32 {s(sSpin)}, 100000")
    A("s_waitcnt lgkmcnt(0)")
    srd(A, SW, P_WS, L.WS_BYTES)
    if load_par:
        A(f"s_load_dword {s(sPar)}, {s(P_WS, 2)}, {L.PAR}")
        A("s_waitcnt lgkmcnt(0)")
        A(f"s_and_b32 {s(sPar)}, {s(sPar)}, 8192")
    prologue(A, "sc1")
    persistent(A)
    step_bases(A)
    if FUSED:
        A(f"s_lshl_b32 {s(sRF)}, {s(sH)}, 1")
        A(f"s_add_u32 {s(sRF)}, {s(sRF)}, {s(sX)}")
        A(f"s_lshl_b32 {s(sRF)}, {s(sRF)}, 3")
        A(f"s_add_u32 {s(sRF)}, {s(sRF)}, {L.F_REC}")
        A(f"s_cmp_eq_u32 {s(sWv)}, 0")
        A(f"s_cselect_b64 {s(sFM, 2)}, 1, 0")
        A(f"s_mov_b32 {s(sKnown)}, 0")
        B = Asm()
        B.uid = A.uid + 300
        over = A.newlabel("kv0")
        kv_ready(A, B, 0, Y)
        A(f"s_branch {over}")
        A.lines += B.lines
        A.label(over)
    A("s_waitcnt lgkmcnt(0)")
    A.c("first segment: keys by DMA, values straight into registers")
    for lds, sb in ((KTL, sKT0), (KTL + 4096, sKT1)):
        A(f"s_add_u32 m0, {s(sW1k)}, {lds}")
        A(f"buffer_load_dwordx4 {v(aW1)}, {s(SW, 4)}, {s(sb)} offen sc1 lds")
    A(f"buffer_load_dwordx4 {v(vVt, 4)}, {v(aW1)}, {s(SW, 4)}, {s(sVTo)} offen sc1")
    A(f"buffer_load_dwordx4 {v(vVt + 4, 4)}, {v(aW1)}, {s(SW, 4)}, {s(sVTp)} offen sc1")
    for r in (sKT0, sKT1, sVTo, sVTp):
        A(f"s_add_u32 {s(r)}, {s(r)}, {32 * 8192}")
    A("s_barrier")
    A.c("first step: the far half of the memory is already staged; hand it to the regular path")
    A(f"ds_read_b128 {v(X + 30, 4)}, {v(aR3)} offset:{MEM + 5120}")
    A(f"ds_read_b128 {v(X + 34, 4)}, {v(aR3)} offset:{MEM + 6144}")
    A(f"ds_read_b64 {v(X + 38, 2)}, {v(aR4)} offset:{MEM + 5120}")
    A("s_waitcnt vmcnt(0)")
    zero_acc(A)
    q_stage(A)
    A.c("wait until every workgroup of the chain has initialised its exchange lines")
    lp = A.newlabel("allinp")
    A(f"v_mov_b32 {v(T2b)}, 0")
    A.label(lp)
    A(f"global_load_dwordx4 {v(X, 4)}, {v(T2b)}, {s(P_DBG, 2)} offset:{L.D_RINIT} sc1")
    A("s_waitcnt vmcnt(0)")
    A(f"v_sad_u8 {v(T2a)}, {v(X)}, 0, 0")
    for i in range(1, 4):
        A(f"v_sad_u8 {v(T2a)}, {v(X + i)}, 0, {v(T2a)}")
    A(f"v_cmp_gt_u32 vcc, 64, {v(T2a)}")
    retry(A, lp)
    A.c("both groups on one die each: group-local data may stay in that die's L2")
    for i in range(4):
        A(f"v_and_b32 {v(X + i)}, 0x20202020, {v(X + i)}")
    A(f"v_or_b32 {v(X)}, {v(X)}, {v(X + 1)}")
    A(f"v_or_b32 {v(X + 2)}, {v(X + 2)}, {v(X + 3)}")
    A(f"v_min_u32 {v(X)}, {v(X)}, {v(X + 2)}")
    A(f"v_readfirstlane_b32 {s(sFast)}, {v(X)}")
    if diag:
        stamp(A, 1)
    if NOWAIT:
        A(f"s_mov_b32 {s(sSpin)}, 0")
    if CNT:
        for i in range(4):
            A(f"s_mov_b32 {s(98 + i)}, 0")
    if PH is not None:
        for i in range(73, 102):
            A(f"s_mov_b32 {s(i)}, {s(sTime + 2) if i < 92 else 0}")
    if fast is None:
        slowv, fin = A.newlabel("spread"), A.newlabel("fin")
        A(f"s_cmp_eq_u32 {s(sFast)}, 0")
        A(f"s_cbranch_scc1 {slowv}")
        step_loop(A, "", hooks)
        A(f"s_branch {fin}")
        A.label(slowv)
        step_loop(A, "sc1", hooks)
        A.label(fin)
    else:
        step_loop(A, lf, hooks)
    A("s_waitcnt vmcnt(0) lgkmcnt(0)")
    if FUSED:
        A("s_barrier")
        rec_flag(A, 255, X)
        rec_flag_store(A, X)
    if diag:
        stamp(A, 2)
        A(f"s_lshl_b32 {s(sT0)}, {s(sX)}, 5")
        A(f"s_add_u32 {s(sT0)}, {s(sT0)}, {s(sH)}")
        A(f"s_lshl_b32 {s(sT0)}, {s(sT0)}, 2")
        A(f"s_add_u32 {s(sT0)}, {s(sT0)}, {s(sWv)}")
        A(f"s_lshl_b32 {s(sT0)}, {s(sT0)}, 5")
        A(f"s_add_u32 {s(sT0)}, {s(sT0)}, {L.STAMP}")
        A(f"s_getreg_b32 {s(sT1)}, hwreg(HW_REG_XCC_ID)")
        for i in range(3):
            A(f"v_mov_b32 {v(X + i)}, {s(sTime + 2 * i)}")
        A(f"v_mov_b32 {v(X + 3)}, {s(sSpin)}")
        A(f"v_mov_b32 {v(X + 4)}, {s(sT1)}")
        A(f"s_lshl_b32 s99, s99, 16")
        A(f"s_or_b32 s98, s98, s99")
        A(f"s_lshl_b32 s101, s101, 16")
        A(f"s_or_b32 s100, s100, s101")
        A(f"v_mov_b32 {v(X + 5)}, s98")
        A(f"v_mov_b32 {v(X + 6)}, s100")
        A(f"s_sub_u32 s92, s92, s90")
        A(f"v_mov_b32 {v(X + 7)}, s92")
        A(f"v_mov_b32 {v(T2b)}, 0")
        A(f"buffer_store_dwordx4 {v(X, 4)}, {v(T2b)}, {s(SW, 4)}, {s(sT0)} offen")
        A(f"buffer_store_dwordx4 {v(X + 4, 4)}, {v(T2b)}, {s(SW, 4)}, {s(sT0)} offen offset:16")
        if PH is not None:
            A(f"s_lshl_b32 {s(sT0)}, {s(sT0)}, 1")
            for i in range(16):
                A(f"v_mov_b32 {v(X + 8 + i)}, {s(sPh + min(i, 9))}")
            for i in range(4):
                A(f"buffer_store_dwordx4 {v(X + 8 + 4 * i, 4)}, {v(T2b)}, {s(SW, 4)}, {s(sT0)} offen offset:{16 * i}")
        A("s_waitcnt vmcnt(0)")


def standalone(par=0, fast=True, diag=False, xa=0):
    A = Asm()
    end = A.newlabel("end")
    A(f"s_cmp_ge_u32 s2, 256")
    A(f"s_cbranch_scc1 {end}")
    A(f"s_and_b32 {s(sX)}, s2, 7")
    A(f"s_sub_u32 {s(sX)}, {s(sX)}, {xa}")
    A(f"s_cmp_ge_u32 {s(sX)}, 2")
    A(f"s_cbranch_scc1 {end}")
    A(f"s_lshr_b32 {s(sH)}, s2, 3")
    if par is not None:
        A(f"s_mov_b32 {s(sPar)}, {8192 * par}")
    body(A, fast, diag, load_par=par is None)
    A.label(end)
    A("s_endpgm")
    return A
```

```python
from asmlib import Asm, v, a, s
import layout as L

SW = 4
SA = 8
SB = 12
SC = 16
P0, P1, P2, PWS = 20, 22, 24, 26
sWv, sRole, sSeg, sStep, sEnd = 28, 29, 30, 31, 32
sT0, sT1, sT2, sT3 = 33, 34, 35, 36
sK = 40
sC = 48
ST = "sc1"
LD = "sc1"


def srd(A, base, ptr, nbytes, off=0):
    if off:
        A(f"s_add_u32 {s(base)}, {s(ptr)}, {off}")
        A(f"s_addc_u32 {s(base + 1)}, {s(ptr + 1)}, 0")
        A(f"s_and_b32 {s(base + 1)}, {s(base + 1)}, 0xffff")
    else:
        A(f"s_mov_b32 {s(base)}, {s(ptr)}")
        A(f"s_and_b32 {s(base + 1)}, {s(ptr + 1)}, 0xffff")
    A(f"s_mov_b32 {s(base + 2)}, {nbytes}")
    A(f"s_mov_b32 {s(base + 3)}, 0x20000")


def common(A, ptrs):
    for dst, off in zip((P0, P1, P2), ptrs):
        A(f"s_load_dwordx2 {s(dst, 2)}, s[0:1], {off}")
    A(f"s_load_dwordx2 {s(PWS, 2)}, s[0:1], {L.K_WS}")
    A("v_lshrrev_b32 v1, 6, v0")
    A(f"v_readfirstlane_b32 {s(sWv)}, v1")
    A("s_waitcnt lgkmcnt(0)")
    srd(A, SW, PWS, L.WS_BYTES)


sE0, sE1, sSpin, sFl, sDbg = 96, 97, 98, 99, 100
SLEEP = 2
vF = 252


def retry(A, top):
    ok = A.newlabel("ok")
    A(f"s_cbranch_vccz {ok}")
    A(f"s_sleep {SLEEP}")
    A(f"s_sub_u32 {s(sSpin)}, {s(sSpin)}, 1")
    A(f"s_cbranch_scc0 {top}")
    A(f"s_mov_b32 {s(sSpin)}, 0")
    A.label(ok)


def get_epoch(A, vt=vF, spin=None):
    lp = A.newlabel("epoch")
    A(f"v_mov_b32 {v(vt + 2)}, 0")
    A.label(lp)
    A(f"global_load_dwordx2 {v(vt, 2)}, {v(vt + 2)}, {s(sDbg, 2)} offset:{L.D_EPOCH} sc1")
    A("s_waitcnt vmcnt(0)")
    A(f"v_cmp_eq_u32 vcc, 0, {v(vt + 1)}")
    (spin or retry)(A, lp)
    A(f"v_readfirstlane_b32 {s(sE0)}, {v(vt)}")
    A(f"v_readfirstlane_b32 {s(sE1)}, {v(vt + 1)}")


def flag_addr(A, n, vt=vF):
    A(f"v_and_b32 {v(vt + 2)}, 63, v0")
    A(f"v_min_u32 {v(vt + 2)}, {n - 1}, {v(vt + 2)}")
    A(f"v_lshlrev_b32 {v(vt + 2)}, 3, {v(vt + 2)}")


def flag_load(A, sbase, vt=vF):
    A(f"buffer_load_dwordx2 {v(vt, 2)}, {v(vt + 2)}, {s(SW, 4)}, {s(sbase)} offen sc1")


def flag_check(A, need, vt=vF):
    A(f"v_subrev_u32 {v(vt)}, {s(sE0)}, {v(vt)}")
    A(f"v_xor_b32 {v(vt + 1)}, {s(sE1)}, {v(vt + 1)}")
    A(f"v_lshrrev_b32 {v(vt + 3)}, 8, {v(vt)}")
    A(f"v_or_b32 {v(vt + 1)}, {v(vt + 1)}, {v(vt + 3)}")
    A(f"v_cmp_eq_u32 vcc, 0, {v(vt + 1)}")
    A(f"v_cndmask_b32 {v(vt)}, 0, {v(vt)}, vcc")
    A(f"v_cmp_gt_u32 vcc, {need}, {v(vt)}")


def poll_flags(A, sbase, n, need, vt=vF):
    lp = A.newlabel("poll")
    flag_addr(A, n, vt)
    A.label(lp)
    flag_load(A, sbase, vt)
    A("s_waitcnt vmcnt(0)")
    flag_check(A, need, vt)
    retry(A, lp)


class Dep:
    sFb, sNeed, sPre = 38, 39, 37

    def __init__(self, base, n, per_set=0, ahead=1, sub=None):
        self.base, self.n, self.per_set, self.ahead, self.sub = base, n, per_set, ahead, sub

    def target(self, A, nxt):
        if nxt:
            A(f"s_add_u32 {s(self.sPre)}, {s(sSeg)}, {s(sStep)}")
        seg = self.sPre if nxt else sSeg
        if self.per_set:
            A(f"s_and_b32 {s(self.sFb)}, {s(seg)}, 1")
            A(f"s_mul_i32 {s(self.sFb)}, {s(self.sFb)}, {8 * self.per_set}")
            A(f"s_add_u32 {s(self.sFb)}, {s(self.sFb)}, {self.base}")
        else:
            A(f"s_mov_b32 {s(self.sFb)}, {self.base}")
        if self.sub:
            self.sub(A, self.sFb, self.sNeed)
        A(f"s_add_u32 {s(self.sNeed)}, {s(seg)}, {self.ahead}")
        if self.ahead > 1:
            A(f"s_min_u32 {s(self.sNeed)}, {s(self.sNeed)}, 64")
        if nxt:
            A(f"s_cmp_lt_u32 {s(seg)}, {s(sEnd)}")
            A(f"s_cselect_b32 {s(self.sNeed)}, {s(self.sNeed)}, 256")

    def __call__(self, A):
        self.target(A, False)
        wait_flags(A, self.sFb, self.n, s(self.sNeed))

    def first(self, A):
        A(f"s_mov_b32 {s(self.sPre)}, 0")

    def ensure(self, A, loads):
        have = A.newlabel("have")
        A(f"s_cmp_lg_u32 {s(self.sPre)}, 0")
        A(f"s_cbranch_scc1 {have}")
        self(A)
        loads()
        A.label(have)

    def look(self, A):
        self.target(A, True)
        A(f"s_cmp_eq_u32 {s(sWv)}, 0")
        A("s_cselect_b64 exec, -1, 0")
        flag_load(A, self.sFb)
        A("s_mov_b64 exec, -1")

    def verdict(self, A, lds):
        skip = A.newlabel("verd")
        A(f"s_cmp_lg_u32 {s(sWv)}, 0")
        A(f"s_cbranch_scc1 {skip}")
        flag_check(A, s(self.sNeed))
        A("s_cmp_eq_u64 vcc, 0")
        A(f"s_cselect_b32 {s(self.sPre)}, 1, 0")
        A(f"v_mov_b32 {v(vF)}, {s(self.sPre)}")
        A(f"v_mov_b32 {v(vF + 1)}, {lds}")
        A(f"ds_write_b32 {v(vF + 1)}, {v(vF)}")
        A.label(skip)

    def fetch(self, A, lds):
        A(f"v_mov_b32 {v(vF + 1)}, {lds}")
        A(f"ds_read_b32 {v(vF)}, {v(vF + 1)}")

    def ahead_loads(self, A, loads):
        skip = A.newlabel("noah")
        A(f"v_readfirstlane_b32 {s(self.sPre)}, {v(vF)}")
        A(f"s_cmp_eq_u32 {s(self.sPre)}, 0")
        A(f"s_cbranch_scc1 {skip}")
        loads()
        A.label(skip)


def wait_flags(A, sbase, n, need):
    skip = A.newlabel("wf")
    A(f"s_cmp_lg_u32 {s(sWv)}, 0")
    A(f"s_cbranch_scc1 {skip}")
    poll_flags(A, sbase, n, need)
    A.label(skip)
    A("s_barrier")


def wait_many(A, base, n, need):
    skip = A.newlabel("wm")
    A(f"s_cmp_ge_u32 {s(sWv)}, {n // 64}")
    A(f"s_cbranch_scc1 {skip}")
    A(f"s_lshl_b32 {s(sT0)}, {s(sWv)}, 9")
    A(f"s_add_u32 {s(sT0)}, {s(sT0)}, {base}")
    poll_flags(A, sT0, 64, need)
    A.label(skip)
    A("s_barrier")


def signal(A, progress):
    A("s_waitcnt vmcnt(0)")
    A("s_barrier")
    publish(A, progress)


def publish(A, progress):
    skip = A.newlabel("sig")
    A(f"s_cmp_lg_u32 {s(sWv)}, 0")
    A(f"s_cbranch_scc1 {skip}")
    A(f"s_add_u32 {s(sT0)}, {s(sE0)}, {progress}")
    A(f"v_mov_b32 {v(vF)}, {s(sT0)}")
    A(f"v_mov_b32 {v(vF + 1)}, {s(sE1)}")
    A("s_mov_b64 exec, 1")
    A(f"buffer_store_dwordx2 {v(vF, 2)}, off, {s(SW, 4)}, {s(sFl)} sc1")
    A("s_mov_b64 exec, -1")
    A.label(skip)


SEGSTAMP = 0


def seg_stamp(A):
    if SEGSTAMP:
        A("s_memrealtime s[92:93]")
        A("s_waitcnt lgkmcnt(0)")
        A(f"s_mov_b32 m0, {s(sSeg)}")
        A("v_writelane_b32 v239, s92, m0")


def signal_seg(A):
    seg_stamp(A)
    A(f"s_add_u32 {s(sT1)}, {s(sSeg)}, {s(sStep)}")
    signal(A, s(sT1))


def rnd2(A, x, y, t):
    A(f"v_cvt_pk_bf16_f32 {v(t)}, {v(x)}, {v(y)}")
    A(f"v_lshlrev_b32 {v(x)}, 16, {v(t)}")
    A(f"v_and_b32 {v(y)}, 0xffff0000, {v(t)}")


def rnd1(A, x):
    A(f"v_cvt_pk_bf16_f32 {v(x)}, {v(x)}, {v(x)}")
    A(f"v_lshlrev_b32 {v(x)}, 16, {v(x)}")


def unpack(A, src, lo, hi):
    A(f"v_and_b32 {v(hi)}, 0xffff0000, {v(src)}")
    A(f"v_lshlrev_b32 {v(lo)}, 16, {v(src)}")


def wave_sum(A, x, t):
    for k in (1, 2, 4, 8):
        A(f"v_add_f32_dpp {v(x)}, {v(x)}, {v(x)} row_ror:{k} row_mask:0xf bank_mask:0xf")
    for op in ("v_permlane16_swap_b32", "v_permlane32_swap_b32"):
        A(f"v_mov_b32 {v(t)}, {v(x)}")
        A(f"{op} {v(x)}, {v(t)}")
        A(f"v_add_f32 {v(x)}, {v(x)}, {v(t)}")


def mod_role(A):
    W, C, ACC, t0, t1, t2, t3 = 16, 60, 72, 2, 3, 4, 5
    common(A, (L.K_C, L.K_WMOD))
    srd(A, SA, P0, 1280)
    srd(A, SB, P1, 640 * 7680)
    A(f"v_lshrrev_b32 {v(t0)}, 2, v0")
    A(f"v_mul_u32_u24 {v(t1)}, 20, {v(t0)}")
    for i in range(5):
        A(f"buffer_load_dword {v(C + 2 * i)}, {v(t1)}, {s(SA, 4)}, 0 offen offset:{4 * i}")
    A(f"v_mul_u32_u24 {v(t1)}, {10 * 7680}, {v(t0)}")
    A(f"v_and_b32 {v(t2)}, 3, v0")
    A(f"v_lshl_add_u32 {v(t1)}, {v(t2)}, 4, {v(t1)}")
    A(f"s_lshl_b32 {s(sT0)}, {s(sRole)}, 6")
    for i in range(10):
        A(f"buffer_load_dwordx4 {v(W + 4 * i, 4)}, {v(t1)}, {s(SB, 4)}, {s(sT0)} offen")
        A(f"s_add_u32 {s(sT0)}, {s(sT0)}, 7680")
    A("s_waitcnt vmcnt(10)")
    A(f"s_mov_b32 {s(sC)}, 0xbfb8aa3b")
    for i in range(5):
        unpack(A, C + 2 * i, C + 2 * i, C + 2 * i + 1)
    for i in range(10):
        A(f"v_mul_f32 {v(t2)}, {s(sC)}, {v(C + i)}")
        A(f"v_exp_f32 {v(t2)}, {v(t2)}")
        A(f"v_add_f32 {v(t2)}, 1.0, {v(t2)}")
        A(f"v_rcp_f32 {v(t2)}, {v(t2)}")
        A(f"v_mul_f32 {v(C + i)}, {v(C + i)}, {v(t2)}")
        rnd1(A, C + i)
    for i in range(10):
        A(f"s_waitcnt vmcnt({9 - i})")
        for d in range(4):
            unpack(A, W + 4 * i + d, t2, t3)
            if i == 0:
                A(f"v_mul_f32 {v(ACC + 2 * d)}, {v(C)}, {v(t2)}")
                A(f"v_mul_f32 {v(ACC + 2 * d + 1)}, {v(C)}, {v(t3)}")
            else:
                A(f"v_fmac_f32 {v(ACC + 2 * d)}, {v(C + i)}, {v(t2)}")
                A(f"v_fmac_f32 {v(ACC + 2 * d + 1)}, {v(C + i)}, {v(t3)}")
    for k in (4, 8):
        for j in range(8):
            A(f"v_add_f32_dpp {v(ACC + j)}, {v(ACC + j)}, {v(ACC + j)} row_ror:{k} row_mask:0xf bank_mask:0xf")
    for op in ("v_permlane16_swap_b32", "v_permlane32_swap_b32"):
        for j in range(8):
            A(f"v_mov_b32 {v(W + j)}, {v(ACC + j)}")
        for j in range(8):
            A(f"{op} {v(ACC + j)}, {v(W + j)}")
        for j in range(8):
            A(f"v_add_f32 {v(ACC + j)}, {v(ACC + j)}, {v(W + j)}")
    A(f"v_and_b32 {v(t2)}, 3, v0")
    A(f"v_lshlrev_b32 {v(t2)}, 5, {v(t2)}")
    A(f"s_lshl_b32 {s(sT0)}, {s(sWv)}, 7")
    A(f"v_add_u32 {v(t2)}, {s(sT0)}, {v(t2)}")
    A(f"ds_write_b128 {v(t2)}, {v(ACC, 4)}")
    A(f"ds_write_b128 {v(t2)}, {v(ACC + 4, 4)} offset:16")
    A("s_waitcnt lgkmcnt(0)")
    A("s_barrier")
    A(f"v_and_b32 {v(t2)}, 31, v0")
    A(f"v_lshlrev_b32 {v(t2)}, 2, {v(t2)}")
    for i in range(4):
        A(f"ds_read_b32 {v(W + i)}, {v(t2)} offset:{128 * i}")
    A("s_waitcnt lgkmcnt(0)")
    A(f"v_add_f32 {v(W)}, {v(W)}, {v(W + 1)}")
    A(f"v_add_f32 {v(W + 2)}, {v(W + 2)}, {v(W + 3)}")
    A(f"v_add_f32 {v(W)}, {v(W)}, {v(W + 2)}")
    rnd1(A, W)
    A(f"s_lshl_b32 {s(sT0)}, {s(sRole)}, 7")
    A(f"s_add_u32 {s(sT0)}, {s(sT0)}, {L.MOD}")
    skip = A.newlabel("modst")
    A(f"s_cmp_lg_u32 {s(sWv)}, 0")
    A(f"s_cbranch_scc1 {skip}")
    A(f"buffer_store_dword {v(W)}, {v(t2)}, {s(SW, 4)}, {s(sT0)} offen {ST}")
    A.label(skip)


class Row:
    l, o16, o8, o4, f0, f2, t0, t1, t2 = 1, 2, 3, 4, 5, 6, 7, 8, 9

    @staticmethod
    def setup(A):
        R = Row
        A(f"v_and_b32 {v(R.l)}, 63, v0")
        A(f"v_lshlrev_b32 {v(R.o16)}, 4, {v(R.l)}")
        A(f"v_lshlrev_b32 {v(R.o8)}, 3, {v(R.l)}")
        A(f"v_lshlrev_b32 {v(R.o4)}, 2, {v(R.l)}")
        for dst, sh in ((R.f0, 0), (R.f2, 1)):
            A(f"v_lshrrev_b32 {v(R.t0)}, {2 + sh}, {v(R.l)}")
            A(f"v_lshlrev_b32 {v(dst)}, 7, {v(R.t0)}")
            A(f"v_bfe_u32 {v(R.t0)}, {v(R.l)}, {sh}, 1")
            A(f"v_lshl_add_u32 {v(dst)}, {v(R.t0)}, 6, {v(dst)}")
            A(f"v_bfe_u32 {v(R.t0)}, {v(R.l)}, {sh + 1}, 1")
            A(f"v_lshl_add_u32 {v(dst)}, {v(R.t0)}, 3, {v(dst)}")
        A(f"v_and_b32 {v(R.t0)}, 1, {v(R.l)}")
        A(f"v_lshl_add_u32 {v(R.f2)}, {v(R.t0)}, 2, {v(R.f2)}")
        A(f"s_mov_b32 {s(sC)}, 0x3acccccd")
        A(f"s_mov_b32 {s(sC + 1)}, 0x3727c5ac")

    @staticmethod
    def load_bf16(A, dst, sd, so, pol=""):
        R = Row
        A(f"buffer_load_dwordx2 {v(dst, 2)}, {v(R.o8)}, {s(sd, 4)}, {s(so)} offen {pol}")
        A(f"buffer_load_dwordx2 {v(dst + 2, 2)}, {v(R.o8)}, {s(sd, 4)}, {s(so)} offen offset:512 {pol}")
        A(f"buffer_load_dword {v(dst + 4)}, {v(R.o4)}, {s(sd, 4)}, {s(so)} offen offset:1024 {pol}")

    @staticmethod
    def store_bf16(A, src, so):
        R = Row
        A(f"buffer_store_dwordx2 {v(src, 2)}, {v(R.o8)}, {s(SW, 4)}, {s(so)} offen {ST}")
        A(f"buffer_store_dwordx2 {v(src + 2, 2)}, {v(R.o8)}, {s(SW, 4)}, {s(so)} offen offset:512 {ST}")
        A(f"buffer_store_dword {v(src + 4)}, {v(R.o4)}, {s(SW, 4)}, {s(so)} offen offset:1024 {ST}")

    @staticmethod
    def load_f32(A, dst, so):
        R = Row
        A(f"buffer_load_dwordx4 {v(dst, 4)}, {v(R.o16)}, {s(SW, 4)}, {s(so)} offen {LD}")
        A(f"buffer_load_dwordx4 {v(dst + 4, 4)}, {v(R.o16)}, {s(SW, 4)}, {s(so)} offen offset:1024 {LD}")
        A(f"buffer_load_dwordx2 {v(dst + 8, 2)}, {v(R.o8)}, {s(SW, 4)}, {s(so)} offen offset:2048 {LD}")

    @staticmethod
    def lds_bias(A, sb):
        A(f"v_add_u32 {v(Row.f0)}, {s(sb)}, {v(Row.f0)}")
        A(f"v_add_u32 {v(Row.f2)}, {s(sb)}, {v(Row.f2)}")

    @staticmethod
    def put_g(A, src, off=0):
        R = Row
        A(f"ds_write_b64 {v(R.f0)}, {v(src, 2)} offset:{off}")
        A(f"ds_write_b64 {v(R.f0)}, {v(src + 2, 2)} offset:{off + 2048}")
        A(f"ds_write_b32 {v(R.f2)}, {v(src + 4)} offset:{off + 4096}")

    @staticmethod
    def flush_block(A, base, srow, tmp):
        R = Row
        A("s_waitcnt lgkmcnt(0)")
        A("s_barrier")
        A(f"v_lshlrev_b32 {v(R.t0)}, 4, v0")
        A(f"v_lshrrev_b32 {v(R.t1)}, 2, {v(R.t0)}")
        A(f"ds_read_b128 {v(tmp, 4)}, {v(R.t0)}")
        A(f"ds_read_b32 {v(tmp + 4)}, {v(R.t1)} offset:4096")
        A(f"s_lshr_b32 {s(sT0)}, {s(srow)}, 2")
        A(f"s_mul_i32 {s(sT0)}, {s(sT0)}, 5120")
        A(f"s_add_u32 {s(sT0)}, {s(sT0)}, {base}")
        A(f"s_add_u32 {s(sT1)}, {s(sT0)}, 4096")
        A("s_waitcnt lgkmcnt(1)")
        A(f"buffer_store_dwordx4 {v(tmp, 4)}, {v(R.t0)}, {s(SW, 4)}, {s(sT0)} offen {ST}")
        A("s_waitcnt lgkmcnt(0)")
        A(f"buffer_store_dword {v(tmp + 4)}, {v(R.t1)}, {s(SW, 4)}, {s(sT1)} offen {ST}")

    @staticmethod
    def store_g(A, src, base, srow, tmp):
        Row.put_g(A, src)
        Row.flush_block(A, base, srow, tmp)

    @staticmethod
    def one_row_per_wave(A):
        A(f"s_lshl_b32 {s(sT0)}, {s(sWv)}, 4")
        Row.lds_bias(A, sT0)

    @staticmethod
    def unpack(A, src, dst):
        for i in range(5):
            unpack(A, src + i, dst + 2 * i, dst + 2 * i + 1)

    @staticmethod
    def round(A, x, pk):
        for i in range(5):
            rnd2(A, x + 2 * i, x + 2 * i + 1, pk + i)

    @staticmethod
    def pack(A, x, pk):
        for i in range(5):
            A(f"v_cvt_pk_bf16_f32 {v(pk + i)}, {v(x + 2 * i)}, {v(x + 2 * i + 1)}")

    @staticmethod
    def norm(A, x, d, pk):
        R = Row
        m, q, t = R.t0, R.t1, R.t2
        A(f"v_add_f32 {v(m)}, {v(x)}, {v(x + 1)}")
        A(f"v_add_f32 {v(q)}, {v(x + 2)}, {v(x + 3)}")
        for i in range(4, 10, 2):
            A(f"v_add_f32 {v(m)}, {v(m)}, {v(x + i)}")
            A(f"v_add_f32 {v(q)}, {v(q)}, {v(x + i + 1)}")
        A(f"v_add_f32 {v(m)}, {v(m)}, {v(q)}")
        wave_sum(A, m, t)
        A(f"v_mul_f32 {v(m)}, {s(sC)}, {v(m)}")
        for i in range(10):
            A(f"v_sub_f32 {v(d + i)}, {v(x + i)}, {v(m)}")
        A(f"v_mul_f32 {v(q)}, {v(d)}, {v(d)}")
        for i in range(1, 10):
            A(f"v_fmac_f32 {v(q)}, {v(d + i)}, {v(d + i)}")
        rnd1(A, m)
        wave_sum(A, q, t)
        for i in range(10):
            A(f"v_sub_f32 {v(d + i)}, {v(x + i)}, {v(m)}")
        A(f"v_mul_f32 {v(q)}, {s(sC)}, {v(q)}")
        rnd1(A, q)
        A(f"v_add_f32 {v(q)}, {s(sC + 1)}, {v(q)}")
        rnd1(A, q)
        A(f"v_sqrt_f32 {v(q)}, {v(q)}")
        R.round(A, d, pk)
        rnd1(A, q)
        A(f"v_rcp_f32 {v(q)}, {v(q)}")
        for i in range(10):
            A(f"v_mul_f32 {v(d + i)}, {v(d + i)}, {v(q)}")

    @staticmethod
    def modulate(A, d, sc, sh, pk):
        R = Row
        R.round(A, d, pk)
        for i in range(10):
            A(f"v_mul_f32 {v(d + i)}, {v(d + i)}, {v(sc + i)}")
        R.round(A, d, pk)
        for i in range(10):
            A(f"v_add_f32 {v(d + i)}, {v(d + i)}, {v(sh + i)}")

    @staticmethod
    def load_mod(A, dst, chunk):
        A(f"s_mov_b32 {s(sT0)}, {L.MOD + chunk * 2560}")
        Row.load_f32(A, dst, sT0)

    @staticmethod
    def one_plus(A, x, pk):
        for i in range(10):
            A(f"v_add_f32 {v(x + i)}, 1.0, {v(x + i)}")
        Row.round(A, x, pk)


def row_loop(A, body):
    top, end = A.newlabel("row"), A.newlabel("rowend")
    A(f"s_cmp_ge_u32 {s(sSeg)}, {s(sEnd)}")
    A(f"s_cbranch_scc1 {end}")
    A.label(top)
    body()
    A(f"s_add_u32 {s(sSeg)}, {s(sSeg)}, {s(sStep)}")
    A(f"s_cmp_lt_u32 {s(sSeg)}, {s(sEnd)}")
    A(f"s_cbranch_scc1 {top}")
    A.label(end)


def ln1_role(A):
    X, D, PK, SC, SH, IN = 10, 20, 30, 36, 46, 56
    common(A, (L.K_X,))
    A(f"s_add_u32 {s(sSeg)}, {s(sSeg)}, {s(sWv)}")
    srd(A, SA, P0, 2048 * 1280)
    Row.setup(A)
    Row.one_row_per_wave(A)
    Row.load_mod(A, SH, 0)
    Row.load_mod(A, SC, 1)
    A("s_waitcnt vmcnt(0)")
    Row.one_plus(A, SC, PK)

    def body():
        A(f"s_mul_i32 {s(sT2)}, {s(sSeg)}, 1280")
        Row.load_bf16(A, IN, SA, sT2)
        A("s_waitcnt vmcnt(0)")
        Row.unpack(A, IN, X)
        Row.norm(A, X, D, PK)
        Row.modulate(A, D, SC, SH, PK)
        Row.pack(A, D, PK)
        Row.store_g(A, PK, L.H, sSeg, X)
        A("s_barrier")
    row_loop(A, body)


def ln1_fused(A, between=None, after=None):
    D, X, PK, SC, SH, IN = 10, 50, 60, 66, 76, 86
    sRow = 64
    common(A, (L.K_X,))
    srd(A, SB, P0, 2048 * 1280)
    Row.setup(A)
    A(f"s_lshl_b32 {s(sT0)}, {s(sRole)}, 2")
    A(f"s_add_u32 {s(sT0)}, {s(sT0)}, {s(sWv)}")
    A(f"s_lshl_b32 {s(sT0)}, {s(sT0)}, 2")
    for i in range(4):
        A(f"s_add_u32 {s(sRow + i)}, {s(sT0)}, {i}")
        A(f"s_mul_i32 {s(sT2)}, {s(sRow + i)}, 1280")
        Row.load_bf16(A, IN + 6 * i, SB, sT2)
    extra = between(A) if between else 0
    for i in range(4):
        A(f"s_waitcnt vmcnt({9 - 3 * i + extra})")
        Row.unpack(A, IN + 6 * i, X)
        Row.norm(A, X, D + 10 * i, PK)
    if after:
        after(A)
    get_epoch(A)
    A(f"s_mov_b32 {s(sT2)}, {L.F_MOD}")
    wait_flags(A, sT2, 40, 1)
    Row.load_mod(A, SH, 0)
    Row.load_mod(A, SC, 1)
    A("s_waitcnt vmcnt(0)")
    Row.one_plus(A, SC, PK)
    A(f"s_mul_i32 {s(sT0)}, {s(sWv)}, 5120")
    Row.lds_bias(A, sT0)
    A(f"v_add_u32 {v(Row.l)}, {s(sT0)}, {v(Row.o16)}")
    for i in range(4):
        Row.modulate(A, D + 10 * i, SC, SH, IN + 6 * i)
        Row.pack(A, D + 10 * i, IN + 6 * i)
        Row.put_g(A, IN + 6 * i, 16 * i)
    A("s_waitcnt lgkmcnt(0)")
    for i in range(5):
        A(f"ds_read_b128 {v(D + 2 + 4 * i, 4)}, {v(Row.l)} offset:{1024 * i}")
    A(f"s_mul_i32 {s(sT0)}, {s(sRow)}, 1280")
    A(f"s_add_u32 {s(sT0)}, {s(sT0)}, {L.H}")
    A(f"s_add_u32 {s(sT1)}, {s(sT0)}, 4096")
    for i in range(5):
        A(f"s_waitcnt lgkmcnt({4 - i})")
        A(f"buffer_store_dwordx4 {v(D + 2 + 4 * i, 4)}, {v(Row.o16)}, {s(SW, 4)}, {s(sT1 if i == 4 else sT0)} offen offset:{1024 * (i & 3)} {ST}")


def seg_rows(A, body, wait):
    sRow = 56
    top = A.newlabel("segrow")
    A.label(top)
    A(f"s_lshl_b32 {s(sRow)}, {s(sSeg)}, 3")
    A(f"s_add_u32 {s(sRow)}, {s(sRow)}, {s(sRole)}")
    A(f"s_lshl_b32 {s(sRow)}, {s(sRow)}, 2")
    A(f"s_add_u32 {s(sRow)}, {s(sRow)}, {s(sWv)}")
    body(sRow, wait)
    signal_seg(A)
    A(f"s_add_u32 {s(sSeg)}, {s(sSeg)}, {s(sStep)}")
    A(f"s_cmp_lt_u32 {s(sSeg)}, {s(sEnd)}")
    A(f"s_cbranch_scc1 {top}")


def ln23_role(A, wait=None):
    X, D, PK, SC, SH, GA, IN, P = 10, 20, 30, 36, 46, 56, 66, 72
    common(A, (L.K_X,))
    if not wait:
        A(f"s_add_u32 {s(sSeg)}, {s(sSeg)}, {s(sWv)}")
    srd(A, SA, P0, 2048 * 1280)
    Row.setup(A)
    Row.one_row_per_wave(A)
    Row.load_mod(A, GA, 2)
    Row.load_mod(A, SH, 3)
    Row.load_mod(A, SC, 4)
    A("s_waitcnt vmcnt(0)")
    Row.one_plus(A, SC, PK)

    def body(sRow=sSeg, wait=None):
        A(f"s_mul_i32 {s(sT2)}, {s(sRow)}, 1280")
        Row.load_bf16(A, IN, SA, sT2)
        if wait:
            wait(A)
        A(f"s_lshl_b32 {s(sT3)}, {s(sT2)}, 1")
        A(f"s_add_u32 {s(sT3)}, {s(sT3)}, {L.PO}")
        for k in range(4):
            Row.load_f32(A, P + 10 * k, sT3)
            A(f"s_add_u32 {s(sT3)}, {s(sT3)}, {2048 * 2560}")
        A("s_waitcnt vmcnt(6)")
        Row.unpack(A, IN, X)
        for i in range(10):
            A(f"v_add_f32 {v(P + i)}, {v(P + i)}, {v(P + 10 + i)}")
        A("s_waitcnt vmcnt(0)")
        for i in range(10):
            A(f"v_add_f32 {v(P + 20 + i)}, {v(P + 20 + i)}, {v(P + 30 + i)}")
        for i in range(10):
            A(f"v_add_f32 {v(D + i)}, {v(P + i)}, {v(P + 20 + i)}")
        Row.round(A, D, PK)
        for i in range(10):
            A(f"v_mul_f32 {v(D + i)}, {v(D + i)}, {v(GA + i)}")
        Row.round(A, D, PK)
        for i in range(10):
            A(f"v_add_f32 {v(X + i)}, {v(X + i)}, {v(D + i)}")
        Row.round(A, X, IN)
        A(f"s_add_u32 {s(sT3)}, {s(sT2)}, {L.X2}")
        Row.store_bf16(A, IN, sT3)
        Row.norm(A, X, D, PK)
        Row.modulate(A, D, SC, SH, PK)
        Row.round(A, D, P)
        A(f"s_add_u32 {s(sT3)}, {s(sT2)}, {L.H2}")
        Row.store_bf16(A, P, sT3)
        Row.norm(A, D, X, PK)
        Row.pack(A, X, PK)
        Row.store_g(A, PK, L.T3, sRow, X)
        if not wait:
            A("s_barrier")
    seg_rows(A, body, wait) if wait else row_loop(A, body)


def ln4_role(A, wait=None):
    X, D, PK, IN = 10, 20, 30, 36
    sIn = 57
    common(A, ())
    if not wait:
        A(f"s_add_u32 {s(sSeg)}, {s(sSeg)}, {s(sWv)}")
    Row.setup(A)
    Row.one_row_per_wave(A)
    if wait:
        wait.first(A)

    def load():
        Row.load_bf16(A, IN, SW, sIn, LD)

    def body(sRow=sSeg, wait=None):
        A(f"s_mul_i32 {s(sIn)}, {s(sRow)}, 1280")
        A(f"s_add_u32 {s(sIn)}, {s(sIn)}, {L.X1}")
        if wait:
            wait.ensure(A, load)
            wait.look(A)
            A(f"s_add_u32 {s(sIn)}, {s(sIn)}, 40960")
        else:
            load()
        A("s_waitcnt vmcnt(0)")
        Row.unpack(A, IN, X)
        if wait:
            wait.verdict(A, 8192)
            A("s_waitcnt lgkmcnt(0)")
            A("s_barrier")
            wait.fetch(A, 8192)
            A("s_waitcnt lgkmcnt(0)")
            wait.ahead_loads(A, load)
        Row.norm(A, X, D, PK)
        Row.pack(A, D, PK)
        Row.store_g(A, PK, L.T4, sRow, X)
        if not wait:
            A("s_barrier")
    seg_rows(A, body, wait) if wait else row_loop(A, body)


def mf32(A, d, x, y, c):
    A(f"v_mfma_f32_32x32x16_bf16 {d}, {x}, {y}, {c}")


def qkv_request(A, sUnit):
    t0, t1 = 248, 249
    sMb, sSrc = 57, 58
    A(f"s_lshr_b32 {s(sT0)}, {s(sUnit)}, 5")
    A(f"s_lshl_b32 {s(sT0)}, {s(sT0)}, 3")
    A(f"s_add_u32 {s(sT0)}, {s(sT0)}, {L.K_WQ}")
    A(f"s_load_dwordx2 {s(P1, 2)}, s[0:1], {s(sT0)}")
    A.c("weights: piece 4i+w = rows 16i+4w..+3, 16-byte unit n xor 4*(row&3)")
    A(f"v_bfe_u32 {v(t1)}, v0, 4, 2")
    A(f"v_lshlrev_b32 {v(t0)}, 2, {v(t1)}")
    A(f"v_xor_b32 {v(t0)}, {v(t0)}, v0")
    A(f"v_and_b32 {v(t0)}, 15, {v(t0)}")
    A(f"v_lshlrev_b32 {v(t0)}, 4, {v(t0)}")
    A(f"v_lshl_add_u32 {v(t0)}, {v(t1)}, 13, {v(t0)}")
    A(f"s_and_b32 {s(sT0)}, {s(sUnit)}, 31")
    A(f"s_lshl_b32 {s(sT0)}, {s(sT0)}, 8")
    A(f"s_lshl_b32 {s(sT1)}, {s(sWv)}, 15")
    A(f"s_add_u32 {s(sSrc)}, {s(sT0)}, {s(sT1)}")
    A(f"s_lshl_b32 {s(sMb)}, {s(sWv)}, 10")
    A("s_waitcnt lgkmcnt(0)")
    srd(A, SA, P1, 640 * 8192)
    for i in range(40):
        A(f"s_add_u32 m0, {s(sMb)}, {4096 * i}")
        A(f"buffer_load_dwordx4 {v(t0)}, {s(SA, 4)}, {s(sSrc)} offen lds")
        A(f"s_add_u32 {s(sSrc)}, {s(sSrc)}, {16 * 8192}")
    return 40


def qkv_absorb(A):
    t0, t1, t2 = 248, 249, 250
    A.c("transpose reads: row 4hi+rho, unit 4(w^rho) + 2(G&1) + (cc>>1)")
    A(f"v_bfe_u32 {v(t0)}, v0, 2, 2")
    A(f"v_xor_b32 {v(t1)}, {s(sWv)}, {v(t0)}")
    A(f"v_lshlrev_b32 {v(t1)}, 6, {v(t1)}")
    A(f"v_lshl_add_u32 {v(t1)}, {v(t0)}, 8, {v(t1)}")
    A(f"v_bfe_u32 {v(t0)}, v0, 5, 1")
    A(f"v_lshl_add_u32 {v(t1)}, {v(t0)}, 10, {v(t1)}")
    A(f"v_bfe_u32 {v(t0)}, v0, 4, 1")
    A(f"v_lshl_add_u32 {v(t1)}, {v(t0)}, 5, {v(t1)}")
    A(f"v_and_b32 {v(t0)}, 3, v0")
    A(f"v_lshl_add_u32 {v(t1)}, {v(t0)}, 3, {v(t1)}")
    for c in range(4):
        A(f"s_waitcnt vmcnt({30 - 10 * c})")
        A("s_barrier")
        for ks in range(10 * c, 10 * c + 10):
            for jj in range(2):
                A(f"ds_read_b64_tr_b16 {a(4 * ks + 2 * jj, 2)}, {v(t1)} offset:{(ks - 10 * c) * 4096 + jj * 2048}")
        if c < 3:
            A(f"v_add_u32 {v(t1)}, 40960, {v(t1)}")
    A("s_waitcnt lgkmcnt(0)")
    A("s_barrier")


def qkv_role(A, wait_h=None, done=None, requested=False):
    l, n, g, t0, t1, t2, lin, oa, src = 1, 2, 3, 4, 5, 6, 7, 8, 9
    ACC, PK, HB = 16, 32, 40
    sMat, sMb, sSrc, sOut, sBuf, sNxt = 56, 57, 58, 59, 60, 61
    if not requested:
        common(A, ())
        qkv_request(A, sRole)
        qkv_absorb(A)
    A(f"s_lshr_b32 {s(sMat)}, {s(sRole)}, 5")
    A(f"v_and_b32 {v(l)}, 63, v0")
    A(f"v_and_b32 {v(n)}, 15, v0")
    A(f"v_bfe_u32 {v(g)}, v0, 4, 2")
    A(f"v_lshlrev_b32 {v(lin)}, 4, {v(l)}")
    A(f"s_and_b32 {s(sT0)}, {s(sRole)}, 31")
    A(f"s_lshl_b32 {s(sOut)}, {s(sT0)}, 13")
    A.c("output offset: (G&1)*1024 + hi*256 + n*16 + w*2048")
    A(f"v_and_b32 {v(t0)}, 1, {v(g)}")
    A(f"v_lshlrev_b32 {v(oa)}, 10, {v(t0)}")
    A(f"v_lshrrev_b32 {v(t0)}, 1, {v(g)}")
    A(f"v_lshl_add_u32 {v(oa)}, {v(t0)}, 8, {v(oa)}")
    A(f"v_lshl_add_u32 {v(oa)}, {v(n)}, 4, {v(oa)}")
    A(f"s_lshl_b32 {s(sT0)}, {s(sWv)}, 11")
    A(f"v_add_u32 {v(oa)}, {s(sT0)}, {v(oa)}")
    A(f"s_lshl_b32 {s(sT0)}, {s(sMat)}, 24")
    A(f"s_add_u32 {s(sOut)}, {s(sOut)}, {s(sT0)}")
    A(f"s_add_u32 {s(sOut)}, {s(sOut)}, {L.QT}")
    assert L.KT - L.QT == 1 << 24 and L.VT - L.KT == 1 << 24
    A.c("operand source: (token>>2)*5120 + hi*64 + (token&3)*16 + 128 w")
    A(f"v_bfe_u32 {v(t0)}, {v(l)}, 2, 3")
    A(f"v_mul_u32_u24 {v(src)}, 5120, {v(t0)}")
    A(f"v_lshrrev_b32 {v(t0)}, 5, {v(l)}")
    A(f"v_lshl_add_u32 {v(src)}, {v(t0)}, 6, {v(src)}")
    A(f"v_and_b32 {v(t0)}, 3, {v(l)}")
    A(f"v_lshl_add_u32 {v(src)}, {v(t0)}, 4, {v(src)}")
    A(f"s_lshl_b32 {s(sT0)}, {s(sWv)}, 7")
    A(f"v_add_u32 {v(src)}, {s(sT0)}, {v(src)}")

    def dma_piece(i):
        A(f"buffer_load_dwordx4 {v(src)}, {s(SW, 4)}, {s(sT0)} offen {LD} lds")
        A(f"s_add_u32 {s(sT0)}, {s(sT0)}, 512")

    def dma(sseg, sbuf, now=True):
        A(f"s_min_u32 {s(sT0)}, {s(sseg)}, 63")
        A(f"s_mul_i32 {s(sT0)}, {s(sT0)}, 40960")
        A(f"s_add_u32 {s(sT0)}, {s(sT0)}, {L.H}")
        A(f"s_add_u32 {s(sT1)}, {s(sbuf)}, {s(sMb)}")
        for i in range(10 if now else 0):
            A(f"s_add_u32 m0, {s(sT1)}, {4096 * i}")
            dma_piece(i)

    if wait_h:
        wait_h(A)
    A(f"s_mov_b32 {s(sBuf)}, 0")
    dma(sSeg, sBuf)
    A(f"s_add_u32 {s(sNxt)}, {s(sSeg)}, {s(sStep)}")
    A(f"s_mov_b32 {s(sT2)}, 40960")
    dma(sNxt, sT2)
    A("s_waitcnt vmcnt(10)")
    isv, end = A.newlabel("qkv_v"), A.newlabel("qkv_end")
    A(f"s_cmp_eq_u32 {s(sMat)}, 2")
    A(f"s_cbranch_scc1 {isv}")
    for vmode in (0, 1):
        if vmode:
            A.label(isv)
        top = A.newlabel("qkv")
        A.label(top)
        A("s_barrier")
        if done:
            done(A)
        A(f"s_add_u32 {s(sNxt)}, {s(sNxt)}, {s(sStep)}")
        A(f"s_add_u32 {s(sT2)}, {s(sBuf)}, 81920")
        A(f"s_cmp_ge_u32 {s(sT2)}, 122880")
        A(f"s_cselect_b32 {s(sT3)}, 122880, 0")
        A(f"s_sub_u32 {s(sT2)}, {s(sT2)}, {s(sT3)}")
        dma(sNxt, sT2, False)
        A(f"v_add_u32 {v(t0)}, {s(sBuf)}, {v(lin)}")
        NP = 4
        for ks in range(NP):
            A(f"ds_read_b128 {v(HB + 4 * ks, 4)}, {v(t0)} offset:{1024 * ks}")
        for ks in range(40):
            A(f"s_waitcnt lgkmcnt({min(NP - 1, 39 - ks)})")
            hb = v(HB + 4 * (ks % (NP + 1)), 4)
            c = "0" if ks == 0 else v(ACC, 16)
            if vmode:
                mf32(A, v(ACC, 16), hb, a(4 * ks, 4), c)
            else:
                mf32(A, v(ACC, 16), a(4 * ks, 4), hb, c)
            if ks % 4 == 0:
                A(f"s_add_u32 m0, {s(sT1)}, {1024 * ks}")
            if ks % 4 == 1:
                dma_piece(ks >> 2)
            if ks + NP < 40:
                A(f"ds_read_b128 {v(HB + 4 * ((ks + NP) % (NP + 1)), 4)}, {v(t0)} offset:{1024 * (ks + NP)}")
        A(f"s_lshl_b32 {s(sT0)}, {s(sSeg)}, 18")
        A(f"s_add_u32 {s(sT0)}, {s(sT0)}, {s(sOut)}")
        A(f"s_add_u32 {s(sBuf)}, {s(sBuf)}, 40960")
        A(f"s_cmp_ge_u32 {s(sBuf)}, 122880")
        A(f"s_cselect_b32 {s(sBuf)}, 0, {s(sBuf)}")
        for b in range(2):
            pick = [4 * b, 4 * b + 2, 8 + 4 * b, 10 + 4 * b] if vmode else [8 * b + 2 * i for i in range(4)]
            for i in range(4):
                A(f"v_cvt_pk_bf16_f32 {v(PK + 4 * b + i)}, {v(ACC + pick[i])}, {v(ACC + pick[i] + 1)}")
        for b in range(2):
            A(f"buffer_store_dwordx4 {v(PK + 4 * b, 4)}, {v(oa)}, {s(SW, 4)}, {s(sT0)} offen offset:{512 * b} {ST}")
        A(f"s_add_u32 {s(sSeg)}, {s(sSeg)}, {s(sStep)}")
        if done:
            later = A.newlabel("later")
            A(f"s_cmp_ge_u32 {s(sSeg)}, 4")
            A(f"s_cbranch_scc1 {later}")
            signal(A, s(sSeg))
            A.label(later)
        A("s_waitcnt vmcnt(12)")
        A(f"s_cmp_lt_u32 {s(sSeg)}, {s(sEnd)}")
        A(f"s_cbranch_scc1 {top}")
        if not vmode:
            A(f"s_branch {end}")
    A.label(end)
    A("s_waitcnt vmcnt(0)")


GEMMS = {
    "op": (L.K_WO, 4096, 1280, 16, L.O, 256, "part"),
    "m1": (L.K_W1, 640, 1280, 10, L.T3, 40, "gelu"),
    "m2": (L.K_W2, 640, 1280, 10, L.U1, 40, "res1"),
    "m3": (L.K_W3, 640, 3456, 10, L.T4, 40, "gelu"),
    "m4": (L.K_W4, 1728, 1280, 27, L.U2, 108, "final"),
}
PS, TS, WSZ, BSZ = 544, 4352, 8704, 34816
VERD = 81920


def gelu(A, x, t):
    A(f"v_mul_f32 {v(t)}, {v(x)}, {v(x)}")
    A(f"v_fma_f32 {v(t)}, {v(t)}, {s(sC + 1)}, {v(2)}")
    A(f"v_mul_f32 {v(t)}, {v(t)}, {v(x)}")
    A(f"v_exp_f32 {v(t)}, {v(t)}")
    A(f"v_add_f32 {v(t)}, 1.0, {v(t)}")
    A(f"v_rcp_f32 {v(t)}, {v(t)}")
    A(f"v_mul_f32 {v(x)}, {v(x)}, {v(t)}")


def gemm_role(A, name, wait=None, done=None):
    wptr, wrows, wstride, KSW, abase, aks, epi = GEMMS[name]
    astride = aks * 1024
    glay = name in ("m1", "m3")
    l, c1, g, t0, t1, t2, aA, aW, aR, aO, aE = 1, 2, 3, 4, 5, 6, 7, 8, 9, 10, 11
    ACC, RD, EL, GB, AF = 12, 44, 76, 84, 92
    sNb, sKq, sSrc, sMb, sBuf, sO, sE = 56, 57, 58, 59, 60, 61, 62
    common(A, (wptr, L.K_OUT))
    if name == "op":
        A(f"s_mul_hi_u32 {s(sKq)}, {s(sRole)}, 0x1999999a")
        A(f"s_mul_i32 {s(sT0)}, {s(sKq)}, 10")
        A(f"s_sub_u32 {s(sNb)}, {s(sRole)}, {s(sT0)}")
    else:
        A(f"s_mov_b32 {s(sKq)}, 0")
        A(f"s_mov_b32 {s(sNb)}, {s(sRole)}")
    srd(A, SA, PWS, 64 * astride, abase)
    srd(A, SB, P0, wrows * wstride)
    srd(A, SC, P1, 2048 * 1280)
    for i in range(7):
        A(f"s_mov_b32 {s(sK + i)}, {4096 * i}")
    A(f"v_and_b32 {v(l)}, 63, v0")
    A(f"v_bfe_u32 {v(g)}, v0, 4, 2")
    A.c("weight rows of this wave, 8 rows per piece, 16-byte unit xor 4*((row>>1)&1)")
    A(f"v_and_b32 {v(t0)}, 1, {v(g)}")
    A(f"v_lshlrev_b32 {v(t0)}, 2, {v(t0)}")
    A(f"v_and_b32 {v(t1)}, 7, {v(l)}")
    A(f"v_xor_b32 {v(t0)}, {v(t0)}, {v(t1)}")
    A(f"v_lshrrev_b32 {v(t1)}, 3, {v(l)}")
    A(f"v_mul_u32_u24 {v(t1)}, {wstride}, {v(t1)}")
    A(f"v_lshl_add_u32 {v(aW)}, {v(t0)}, 4, {v(t1)}")
    A(f"s_lshl_b32 {s(sT0)}, {s(sKq)}, 2")
    A(f"s_add_u32 {s(sT0)}, {s(sT0)}, {s(sWv)}")
    A(f"s_mul_i32 {s(sT2)}, {s(sT0)}, {KSW * (128 if glay else 1024)}")
    A(f"s_mul_i32 {s(sSrc)}, {s(sT0)}, {16 * KSW * wstride}")
    A(f"s_lshl_b32 {s(sT1)}, {s(sNb)}, 7")
    A(f"s_add_u32 {s(sSrc)}, {s(sSrc)}, {s(sT1)}")
    A(f"s_mul_i32 {s(sMb)}, {s(sWv)}, 40960")
    rounds = [(0, KSW)] if KSW <= 20 else [(0, 14), (14, KSW)]

    def issue(k0, k1):
        for i in range(2 * (k1 - k0)):
            A(f"s_add_u32 m0, {s(sMb)}, {1024 * i}")
            A(f"buffer_load_dwordx4 {v(aW)}, {s(SB, 4)}, {s(sSrc)} offen lds")
            A(f"s_add_u32 {s(sSrc)}, {s(sSrc)}, {8 * wstride}")

    issue(*rounds[0])
    A.c("activation offsets")
    A(f"v_and_b32 {v(t0)}, 31, {v(l)}")
    if name == "m2":
        A(f"s_lshr_b32 {s(sT0)}, {s(sWv)}, 1")
        A(f"s_add_u32 {s(sT0)}, {s(sT0)}, 1")
        A(f"s_sub_u32 {s(sT1)}, 0, {s(sT0)}")
        A(f"s_bitcmp1_b32 {s(sWv)}, 0")
        A(f"s_cselect_b32 {s(sT0)}, {s(sT0)}, {s(sT1)}")
        A(f"v_add_u32 {v(t0)}, {s(sT0)}, {v(t0)}")
        A(f"v_ashrrev_i32 {v(t1)}, 5, {v(t0)}")
        A(f"v_mul_i32_i24 {v(t1)}, {astride}, {v(t1)}")
        A(f"v_and_b32 {v(t0)}, 31, {v(t0)}")
        A(f"v_lshl_add_u32 {v(aA)}, {v(t0)}, 4, {v(t1)}")
        A(f"v_lshrrev_b32 {v(t0)}, 5, {v(l)}")
        A(f"v_lshl_add_u32 {v(aA)}, {v(t0)}, 9, {v(aA)}")
    elif glay:
        A(f"v_lshrrev_b32 {v(t1)}, 2, {v(t0)}")
        A(f"v_mul_u32_u24 {v(aA)}, 5120, {v(t1)}")
        A(f"v_and_b32 {v(t0)}, 3, {v(t0)}")
        A(f"v_lshl_add_u32 {v(aA)}, {v(t0)}, 4, {v(aA)}")
        A(f"v_lshrrev_b32 {v(t0)}, 5, {v(l)}")
        A(f"v_lshl_add_u32 {v(aA)}, {v(t0)}, 6, {v(aA)}")
    else:
        A(f"v_lshlrev_b32 {v(aA)}, 4, {v(l)}")
    A(f"s_mul_i32 {s(sT0)}, {s(sSeg)}, {astride}")
    A(f"s_add_u32 {s(sT0)}, {s(sT0)}, {s(sT2)}")
    A(f"v_add_u32 {v(aA)}, {s(sT0)}, {v(aA)}")
    A.c("transpose-read address: row 4hi+rho, unit (2(G&1) + (cc>>1)) xor 4(rho>>1)")
    A(f"v_bfe_u32 {v(t0)}, {v(l)}, 2, 2")
    A(f"v_lshlrev_b32 {v(t1)}, 7, {v(t0)}")
    A(f"v_lshrrev_b32 {v(t0)}, 1, {v(t0)}")
    A(f"v_lshl_add_u32 {v(t1)}, {v(t0)}, 6, {v(t1)}")
    A(f"v_lshrrev_b32 {v(t0)}, 1, {v(g)}")
    A(f"v_lshl_add_u32 {v(t1)}, {v(t0)}, 9, {v(t1)}")
    A(f"v_and_b32 {v(t0)}, 1, {v(g)}")
    A(f"v_lshl_add_u32 {v(t1)}, {v(t0)}, 5, {v(t1)}")
    A(f"v_and_b32 {v(t0)}, 3, {v(l)}")
    A(f"v_lshl_add_u32 {v(t1)}, {v(t0)}, 3, {v(t1)}")
    A(f"v_xor_b32 {v(t2)}, 64, {v(t1)}")
    A(f"v_add_u32 {v(t1)}, {s(sMb)}, {v(t1)}")
    A(f"v_add_u32 {v(t2)}, {s(sMb)}, {v(t2)}")
    for ri, (k0, k1) in enumerate(rounds):
        if ri:
            A("s_waitcnt lgkmcnt(0)")
            issue(k0, k1)
        for ks in range(k0, k1):
            if (ks - k0) % 2 == 0:
                A(f"s_waitcnt vmcnt({max(0, 2 * (k1 - ks) - 4)})")
            for T in range(2):
                for jj in range(2):
                    A(f"ds_read_b64_tr_b16 {a(8 * ks + 4 * T + 2 * jj, 2)}, {v(t2 if T else t1)} offset:{(ks - k0) * 2048 + jj * 1024}")
    A.c("reduction and output addresses")
    A(f"v_lshrrev_b32 {v(t0)}, 5, {v(l)}")
    A(f"v_mul_u32_u24 {v(t0)}, {PS}, {v(t0)}")
    A(f"v_and_b32 {v(t1)}, 31, {v(l)}")
    A(f"v_lshl_add_u32 {v(t0)}, {v(t1)}, 4, {v(t0)}")
    A(f"s_mul_i32 {s(sT0)}, {s(sWv)}, {WSZ}")
    A(f"v_add_u32 {v(aW)}, {s(sT0)}, {v(t0)}")
    if epi == "gelu":
        A(f"s_lshr_b32 {s(sT0)}, {s(sWv)}, 1")
        A(f"s_mul_i32 {s(sT0)}, {s(sT0)}, {TS}")
        A(f"s_and_b32 {s(sT1)}, {s(sWv)}, 1")
        A(f"s_mul_i32 {s(sT1)}, {s(sT1)}, {4 * PS}")
        A(f"s_add_u32 {s(sT0)}, {s(sT0)}, {s(sT1)}")
        A(f"v_add_u32 {v(aR)}, {s(sT0)}, {v(t0)}")
        A(f"s_lshl_b32 {s(sT0)}, {s(sNb)}, 2")
        A(f"s_add_u32 {s(sT0)}, {s(sT0)}, {s(sWv)}")
        A(f"s_lshl_b32 {s(sT0)}, {s(sT0)}, 10")
        A(f"v_lshlrev_b32 {v(aO)}, 4, {v(l)}")
        A(f"v_add_u32 {v(aO)}, {s(sT0)}, {v(aO)}")
        A(f"v_mov_b32 {v(c1)}, 0xc0135761")
        A(f"s_mov_b32 {s(sC + 1)}, 0xbdd2d3e8")
        obase, ostride = (L.U1, 40960) if name == "m1" else (L.U2, 108 * 1024)
    else:
        A(f"v_and_b32 {v(t0)}, 7, {v(l)}")
        A(f"v_lshrrev_b32 {v(t1)}, 3, {v(l)}")
        A(f"s_lshl_b32 {s(sT0)}, {s(sWv)}, 3")
        A(f"v_add_u32 {v(t1)}, {s(sT0)}, {v(t1)}")
        A(f"v_mul_u32_u24 {v(aR)}, {PS}, {v(t0)}")
        A(f"v_lshl_add_u32 {v(aR)}, {v(t1)}, 4, {v(aR)}")
        A(f"v_mul_u32_u24 {v(aE)}, 1280, {v(t1)}")
        A(f"v_lshl_add_u32 {v(aE)}, {v(t0)}, 3, {v(aE)}")
        A(f"s_lshl_b32 {s(sT0)}, {s(sNb)}, 7")
        A(f"v_add_u32 {v(aE)}, {s(sT0)}, {v(aE)}")
        if epi == "part":
            A(f"v_lshlrev_b32 {v(aO)}, 1, {v(aE)}")
            A(f"s_mul_i32 {s(sT0)}, {s(sKq)}, {2048 * 2560}")
            A(f"v_add_u32 {v(aO)}, {s(sT0)}, {v(aO)}")
            obase, ostride = L.PO, 81920
        elif epi == "res1":
            obase, ostride = L.X1, 40960
        else:
            obase, ostride = 0, 40960
            A(f"v_lshlrev_b32 {v(t0)}, 4, {v(t0)}")
            A(f"s_lshl_b32 {s(sT0)}, {s(sNb)}, 8")
            A(f"s_add_u32 {s(sT0)}, {s(sT0)}, {L.MOD + 5 * 2560}")
            for T in range(2):
                A(f"buffer_load_dwordx4 {v(GB + 4 * T, 4)}, {v(t0)}, {s(SW, 4)}, {s(sT0)} offen offset:{128 * T} {LD}")
    nE = {"part": 0, "gelu": 0, "res1": 2, "final": 4}[epi]
    nS = 1 if epi == "gelu" else 2

    def a_load(j):
        if glay:
            A(f"buffer_load_dwordx4 {v(AF + 4 * j, 4)}, {v(aA)}, {s(SA, 4)}, 0 offen offset:{128 * j} {LD}")
            return
        A(f"buffer_load_dwordx4 {v(AF + 4 * j, 4)}, {v(aA)}, {s(SA, 4)}, {s(sK + (j >> 2))} offen offset:{1024 * (j & 3)} {LD}")

    A("s_waitcnt lgkmcnt(0)")
    A("s_barrier")
    A(f"s_mov_b32 {s(sBuf)}, 0")
    A(f"s_mul_i32 {s(sE)}, {s(sStep)}, {astride}")

    def a_loads():
        for j in range(KSW):
            a_load(j)

    if wait:
        wait.first(A)
    else:
        a_loads()
    A("s_waitcnt vmcnt(0)")
    top = A.newlabel(name)
    A.label(top)
    if wait:
        wait.ensure(A, a_loads)
    A(f"v_add_u32 {v(aA)}, {s(sE)}, {v(aA)}")
    A(f"s_mul_i32 {s(sO)}, {s(sSeg)}, {ostride}")
    for i in range(nE):
        base = L.H2 if epi == "res1" else (L.X1, L.X2)[i >> 1]
        if i % 2 == 0:
            A(f"s_add_u32 {s(sT0)}, {s(sO)}, {base}")
        A(f"buffer_load_dwordx2 {v(EL + 2 * i, 2)}, {v(aE)}, {s(SW, 4)}, {s(sT0)} offen offset:{64 * (i & 1)} {LD}")
    if obase:
        A(f"s_add_u32 {s(sO)}, {s(sO)}, {obase}")
    if wait:
        wait.look(A)
    for j in range(KSW):
        A(f"s_waitcnt vmcnt({KSW - j + nE if wait else KSW - 1 + nS + nE})")
        for T in range(2):
            mf32(A, v(ACC + 16 * T, 16), a(8 * j + 4 * T, 4), v(AF + 4 * j, 4), "0" if j == 0 else v(ACC + 16 * T, 16))
        if not wait:
            a_load(j)
    if wait:
        A("s_waitcnt vmcnt(0)")
        wait.verdict(A, VERD)
    A(f"v_add_u32 {v(t0)}, {s(sBuf)}, {v(aW)}")
    A(f"v_add_u32 {v(t1)}, {s(sBuf)}, {v(aR)}")
    for T in range(2):
        for a4 in range(4):
            A(f"ds_write_b128 {v(t0)}, {v(ACC + 16 * T + 4 * a4, 4)} offset:{T * TS + 2 * a4 * PS}")
    A(f"s_xor_b32 {s(sBuf)}, {s(sBuf)}, {BSZ}")
    A("s_waitcnt lgkmcnt(0)")
    A("s_barrier")
    second = 2 * PS if epi == "gelu" else TS
    if wait:
        wait.fetch(A, VERD)
    for src in range(4):
        for b in range(2):
            A(f"ds_read_b128 {v(RD + 8 * src + 4 * b, 4)}, {v(t1)} offset:{src * WSZ + b * second}")
    if wait:
        A("s_waitcnt lgkmcnt(8)")
        wait.ahead_loads(A, a_loads)
    A("s_waitcnt lgkmcnt(4)")
    for i in range(8):
        A(f"v_add_f32 {v(RD + i)}, {v(RD + i)}, {v(RD + 8 + i)}")
    A("s_waitcnt lgkmcnt(0)")
    for i in range(8):
        A(f"v_add_f32 {v(RD + 16 + i)}, {v(RD + 16 + i)}, {v(RD + 24 + i)}")
    for i in range(8):
        A(f"v_add_f32 {v(RD + i)}, {v(RD + i)}, {v(RD + 16 + i)}")
    PK, TM = RD + 8, RD + 16
    if epi == "part":
        for T in range(2):
            A(f"buffer_store_dwordx4 {v(RD + 4 * T, 4)}, {v(aO)}, {s(SW, 4)}, {s(sO)} offen offset:{128 * T} {ST}")
    else:
        for i in range(4):
            rnd2(A, RD + 2 * i, RD + 2 * i + 1, PK + i)
        if epi == "gelu":
            for i in range(8):
                gelu(A, RD + i, TM + i)
        else:
            if not wait:
                A(f"s_waitcnt vmcnt({KSW})")
            for i in range(4):
                unpack(A, EL + i, TM + 2 * i, TM + 2 * i + 1)
            for i in range(8):
                A(f"v_add_f32 {v(RD + i)}, {v(RD + i)}, {v(TM + i)}")
            if epi == "final":
                for i in range(4):
                    rnd2(A, RD + 2 * i, RD + 2 * i + 1, PK + i)
                for i in range(8):
                    A(f"v_mul_f32 {v(RD + i)}, {v(RD + i)}, {v(GB + i)}")
                for i in range(4):
                    rnd2(A, RD + 2 * i, RD + 2 * i + 1, PK + i)
                for i in range(4):
                    unpack(A, EL + 4 + i, TM + 2 * i, TM + 2 * i + 1)
                for i in range(8):
                    A(f"v_add_f32 {v(RD + i)}, {v(RD + i)}, {v(TM + i)}")
        for i in range(4):
            A(f"v_cvt_pk_bf16_f32 {v(PK + i)}, {v(RD + 2 * i)}, {v(RD + 2 * i + 1)}")
        if epi == "gelu":
            A(f"buffer_store_dwordx4 {v(PK, 4)}, {v(aO)}, {s(SW, 4)}, {s(sO)} offen {ST}")
        else:
            sd, pol = (SW, ST) if epi == "res1" else (SC, "")
            for T in range(2):
                A(f"buffer_store_dwordx2 {v(PK + 2 * T, 2)}, {v(aE)}, {s(sd, 4)}, {s(sO)} offen offset:{64 * T} {pol}")
    if done:
        done(A)
    elif wait:
        seg_stamp(A)
    A(f"s_add_u32 {s(sSeg)}, {s(sSeg)}, {s(sStep)}")
    A(f"s_cmp_lt_u32 {s(sSeg)}, {s(sEnd)}")
    A(f"s_cbranch_scc1 {top}")
    A("s_waitcnt vmcnt(0)")


def attn_role(A, wait=None, done=None):
    l, g, t0, t1, aF, aK, aV, aL, m, tt = 1, 2, 3, 4, 5, 6, 7, 8, 9, 10
    Q, K, V, KM, VM, S, SM, P, PM, O, PK = 16, 48, 80, 112, 144, 152, 168, 184, 192, 16, 112
    sHd, sB, sM, sLb, sMask = 56, 57, 58, 59, 60
    common(A, ())
    A(f"s_lshl_b32 {s(sHd)}, {s(sRole)}, 2")
    A(f"s_add_u32 {s(sHd)}, {s(sHd)}, {s(sWv)}")
    A(f"s_lshl_b32 {s(sLb)}, {s(sWv)}, 11")
    A(f"v_and_b32 {v(l)}, 63, v0")
    A(f"v_bfe_u32 {v(g)}, v0, 4, 2")
    A(f"v_lshlrev_b32 {v(aL)}, 4, {v(l)}")
    A(f"v_and_b32 {v(t0)}, 1, {v(g)}")
    A(f"v_lshlrev_b32 {v(aF)}, 10, {v(t0)}")
    A(f"v_lshrrev_b32 {v(t0)}, 1, {v(g)}")
    A(f"v_lshl_add_u32 {v(aF)}, {v(t0)}, 8, {v(aF)}")
    A(f"v_and_b32 {v(t1)}, 15, {v(l)}")
    A(f"v_lshl_add_u32 {v(aF)}, {v(t1)}, 4, {v(aF)}")
    A(f"v_lshlrev_b32 {v(aV)}, 3, {v(t0)}")
    A(f"v_and_b32 {v(t1)}, 31, {v(l)}")
    A(f"v_lshl_add_u32 {v(aV)}, {v(t1)}, 4, {v(aV)}")
    A(f"v_lshlrev_b32 {v(aK)}, 6, {v(t0)}")
    A(f"v_bfe_u32 {v(tt)}, {v(l)}, 2, 2")
    A(f"v_lshl_add_u32 {v(aK)}, {v(tt)}, 4, {v(aK)}")
    A(f"v_and_b32 {v(tt)}, 1, {v(l)}")
    A(f"v_lshl_add_u32 {v(aK)}, {v(tt)}, 3, {v(aK)}")
    A(f"v_add_u32 {v(aK)}, {s(sLb)}, {v(aK)}")
    A.c("causal masks: key 8(r>>2) + 4hi + (r&3) <= query")
    A(f"v_lshlrev_b32 {v(t0)}, 2, {v(t0)}")
    A(f"v_sub_u32 {v(t1)}, {v(t1)}, {v(t0)}")
    for r in range(16):
        A(f"v_cmp_le_i32 {s(sMask + 2 * r, 2)}, {8 * (r >> 2) + (r & 3)}, {v(t1)}")
    A(f"s_mov_b32 {s(sC)}, 0x3db504f3")
    A(f"s_mov_b32 {s(sC + 1)}, 0x3fb8aa3b")
    A(f"v_mov_b32 {v(11)}, 0xce6e0000")
    def scale(r0, n):
        for i in range(0, n, 2):
            rnd2(A, r0 + i, r0 + i + 1, tt)
        for i in range(n):
            A(f"v_mul_f32 {v(r0 + i)}, {s(sC)}, {v(r0 + i)}")
        for i in range(0, n, 2):
            rnd2(A, r0 + i, r0 + i + 1, tt)

    top = A.newlabel("attn")
    A.label(top)
    A(f"s_lshl_b32 {s(sT0)}, {s(sSeg)}, 5")
    A(f"s_add_u32 {s(sT0)}, {s(sT0)}, {s(sHd)}")
    A(f"s_lshl_b32 {s(sM)}, {s(sT0)}, 11")
    A(f"s_lshl_b32 {s(sB)}, {s(sT0)}, 13")
    for reg, base in ((K, L.KT), (Q, L.QT), (V, L.VT)):
        for hf in range(2):
            A(f"s_add_u32 {s(sT0)}, {s(sB)}, {base + 4096 * hf}")
            for i in range(4):
                A(f"buffer_load_dwordx4 {v(reg + 16 * hf + 4 * i, 4)}, {v(aF)}, {s(SW, 4)}, {s(sT0)} offen offset:{2048 * (i >> 1) + 512 * (i & 1)} {LD}")
    if wait:
        for i in range(8):
            A(f"s_waitcnt vmcnt({15 - i})")
            mf32(A, v(S, 16), v(K + 4 * i, 4), v(Q + 4 * i, 4), "0" if i == 0 else v(S, 16))
        scale(S, 16)
        for r in range(16):
            A(f"v_cndmask_b32 {v(S + r)}, {v(11)}, {v(S + r)}, {s(sMask + 2 * r, 2)}")
        wait(A)
    A(f"s_add_u32 {s(sT0)}, {s(sM)}, {L.KM}")
    for i in range(2):
        A(f"s_add_u32 m0, {s(sLb)}, {1024 * i}")
        A(f"buffer_load_dwordx4 {v(aL)}, {s(SW, 4)}, {s(sT0)} offen {LD} lds")
        A(f"s_add_u32 {s(sT0)}, {s(sT0)}, 1024")
    A(f"s_add_u32 {s(sT0)}, {s(sM)}, {L.VM}")
    for T in range(4):
        A(f"buffer_load_dwordx2 {v(VM + 2 * T, 2)}, {v(aV)}, {s(SW, 4)}, {s(sT0)} offen offset:{512 * T} {LD}")
    for i in range(0 if wait else 8):
        A(f"s_waitcnt vmcnt({21 - i})")
        mf32(A, v(S, 16), v(K + 4 * i, 4), v(Q + 4 * i, 4), "0" if i == 0 else v(S, 16))
    A("s_waitcnt vmcnt(4)")
    for i in range(8):
        for jj in range(2):
            A(f"ds_read_b64_tr_b16 {v(KM + 4 * i + 2 * jj, 2)}, {v(aK)} offset:{(16 * i + 8 * jj) * 16}")

    for i in range(8):
        A(f"s_waitcnt lgkmcnt({14 - 2 * i})")
        mf32(A, v(SM, 16), v(KM + 4 * i, 4), v(Q + 4 * i, 4), "0" if i == 0 else v(SM, 16))
    if not wait:
        scale(S, 16)
        for r in range(16):
            A(f"v_cndmask_b32 {v(S + r)}, {v(11)}, {v(S + r)}, {s(sMask + 2 * r, 2)}")
    scale(SM, 4)
    vals = [S + i for i in range(16)] + [SM + i for i in range(4)]
    A(f"v_max3_f32 {v(m)}, {v(vals[0])}, {v(vals[1])}, {v(vals[2])}")
    for i in range(3, 19, 2):
        A(f"v_max3_f32 {v(m)}, {v(m)}, {v(vals[i])}, {v(vals[i + 1])}")
    A(f"v_max_f32 {v(m)}, {v(m)}, {v(vals[19])}")
    A(f"v_mov_b32 {v(tt)}, {v(m)}")
    A(f"v_permlane32_swap_b32 {v(m)}, {v(tt)}")
    A(f"v_max_f32 {v(m)}, {v(m)}, {v(tt)}")
    for r in vals:
        A(f"v_sub_f32 {v(r)}, {v(r)}, {v(m)}")
    for r in vals:
        A(f"v_mul_f32 {v(r)}, {s(sC + 1)}, {v(r)}")
    for r in vals:
        A(f"v_exp_f32 {v(r)}, {v(r)}")
    A(f"v_add_f32 {v(m)}, {v(vals[0])}, {v(vals[1])}")
    A(f"v_add_f32 {v(tt)}, {v(vals[2])}, {v(vals[3])}")
    for i in range(4, 20, 2):
        A(f"v_add_f32 {v(m)}, {v(m)}, {v(vals[i])}")
        A(f"v_add_f32 {v(tt)}, {v(tt)}, {v(vals[i + 1])}")
    A(f"v_add_f32 {v(m)}, {v(m)}, {v(tt)}")
    A(f"v_mov_b32 {v(tt)}, {v(m)}")
    A(f"v_permlane32_swap_b32 {v(m)}, {v(tt)}")
    A(f"v_add_f32 {v(m)}, {v(m)}, {v(tt)}")
    A(f"v_rcp_f32 {v(m)}, {v(m)}")
    for r in vals:
        A(f"v_mul_f32 {v(r)}, {v(r)}, {v(m)}")
    for b in range(2):
        for i, r in enumerate((4 * b, 4 * b + 2, 8 + 4 * b, 10 + 4 * b)):
            A(f"v_cvt_pk_bf16_f32 {v(P + 4 * b + i)}, {v(S + r)}, {v(S + r + 1)}")
    for i in range(2):
        A(f"v_cvt_pk_bf16_f32 {v(PM + i)}, {v(SM + 2 * i)}, {v(SM + 2 * i + 1)}")
    A("s_waitcnt vmcnt(0)")
    for T in range(4):
        A(f"v_mfma_f32_32x32x8_bf16 {v(O + 16 * T, 16)}, {v(VM + 2 * T, 2)}, {v(PM, 2)}, 0")
    for b in range(2):
        for T in range(4):
            mf32(A, v(O + 16 * T, 16), v(V + 8 * T + 4 * b, 4), v(P + 4 * b, 4), v(O + 16 * T, 16))
    A(f"s_add_u32 {s(sT0)}, {s(sB)}, {L.O}")
    A(f"s_add_u32 {s(sT1)}, {s(sT0)}, 4096")
    for T in range(4):
        for i in range(8):
            A(f"v_cvt_pk_bf16_f32 {v(PK + 8 * T + i)}, {v(O + 16 * T + 2 * i)}, {v(O + 16 * T + 2 * i + 1)}")
        for b in range(2):
            k = 2 * T + b
            A(f"buffer_store_dwordx4 {v(PK + 4 * k, 4)}, {v(aL)}, {s(SW, 4)}, {s(sT1 if k >= 4 else sT0)} offen offset:{1024 * (k & 3)} {ST}")
    if done:
        done(A)
    A(f"s_add_u32 {s(sSeg)}, {s(sSeg)}, {s(sStep)}")
    A(f"s_cmp_lt_u32 {s(sSeg)}, {s(sEnd)}")
    A(f"s_cbranch_scc1 {top}")
    A("s_waitcnt vmcnt(0)")


def probe_role(A, fused=False):
    common(A, ())
    A("v_mov_b32 v2, 0")
    if fused:
        A.c("next tag = last tag + 256, never zero in its high word")
        A(f"s_load_dwordx2 {s(56, 2)}, {s(PWS, 2)}, {L.EPOCH}")
        A("s_waitcnt lgkmcnt(0)")
        A("s_and_b32 s56, s56, 0xffffff00")
        A("s_add_u32 s56, s56, 256")
        A("s_addc_u32 s57, s57, 0")
        A("s_max_u32 s57, s57, 1")
        A("v_mov_b32 v4, s56")
        A("v_mov_b32 v5, s57")
        A(f"global_store_dwordx2 v2, v[4:5], {s(sDbg, 2)} offset:{L.D_EPOCH} sc1")
        A(f"s_mov_b32 {s(sT2)}, {L.EPOCH}")
        A(f"buffer_store_dwordx2 v[4:5], v2, {s(SW, 4)}, {s(sT2)} offen sc1")
        A("s_waitcnt vmcnt(0)")
    A("v_mov_b32 v3, -1")
    for k in range(2):
        A(f"s_mov_b32 {s(sK + k)}, -1")
    for rep in range(5):
        for k in range(2):
            A(f"s_mov_b32 {s(sT2)}, {L.EXM + 6144 + 8192 * k}")
            A(f"s_memtime {s(56, 2)}")
            A("s_waitcnt lgkmcnt(0)")
            A(f"buffer_store_dword v3, v2, {s(SW, 4)}, {s(sT2)} offen sc1")
            A("s_waitcnt vmcnt(0)")
            A(f"s_memtime {s(58, 2)}")
            A("s_waitcnt lgkmcnt(0)")
            if rep:
                A(f"s_sub_u32 {s(sT0)}, s58, s56")
                A(f"s_min_u32 {s(sK + k)}, {s(sK + k)}, {s(sT0)}")
    A(f"s_cmp_lt_u32 {s(sK + 1)}, {s(sK)}")
    A(f"s_cselect_b32 {s(sT0)}, 8192, 0")
    if fused:
        A(f"s_or_b32 {s(sT0)}, {s(sT0)}, 1")
        A(f"v_mov_b32 v3, {s(sT0)}")
        A(f"global_store_dword v2, v3, {s(sDbg, 2)} offset:{L.D_PAR} sc1")
        return
    A(f"v_mov_b32 v3, {s(sT0)}")
    A(f"s_mov_b32 {s(sT2)}, {L.PAR}")
    A(f"buffer_store_dword v3, v2, {s(SW, 4)}, {s(sT2)} offen sc1")
```

```python
import sys
from asmlib import Asm, build_file, s, v
import roles as R, rec, layout as L
NAME = "adaLN_cond__memory_aug_recurrent_mem_tr__mixer_s_mlp__prompt_kernel"
opt = {}
for x in sys.argv[2:]:
    k, val = x.split("="); opt[k] = int(val)
    if k.isupper(): setattr(R if hasattr(R, k) and not hasattr(rec, k) else rec, k, int(val))
rec.FUSED = True
DIAG = opt.get("diag", 0)
R.SEGSTAMP = DIAG
LEADER = 0
sWi = 95

A = Asm()
end, worker = A.newlabel("end"), A.newlabel("worker")
A("s_cmp_ge_u32 s2, 256")
A(f"s_cbranch_scc1 {end}")
A(f"s_and_b32 {s(rec.sX)}, s2, 7")
A(f"s_cmp_ge_u32 {s(rec.sX)}, 2")
A(f"s_cbranch_scc1 {worker}")
A(f"s_lshr_b32 {s(rec.sH)}, s2, 3")
rec.body(A, None, bool(DIAG))
A("s_endpgm")
A.uid += 2000
A.label(worker)

def widx():
    A(f"s_and_b32 {s(sWi)}, s2, 7")
    A(f"s_sub_u32 {s(sWi)}, {s(sWi)}, 2")
    A(f"s_lshl_b32 {s(sWi)}, {s(sWi)}, 5")
    A(f"s_lshr_b32 {s(R.sT0)}, s2, 3")
    A(f"s_add_u32 {s(sWi)}, {s(sWi)}, {s(R.sT0)}")

def stamp(i):
    if DIAG:
        A(f"s_memrealtime s[{64 + 2 * i}:{65 + 2 * i}]")
        A("s_waitcnt lgkmcnt(0)")
        A(f"v_mov_b32 v{240 + i}, s{64 + 2 * i}")

def flag(base, idx):
    A(f"s_lshl_b32 {s(R.sFl)}, {idx}, 3")
    A(f"s_add_u32 {s(R.sFl)}, {s(R.sFl)}, {base}")

widx()
stamp(0)
A(f"s_load_dwordx2 {s(R.sDbg, 2)}, s[0:1], {L.K_DBG}")
A(f"s_mov_b32 {s(R.sSpin)}, 200000")
A("s_waitcnt lgkmcnt(0)")
sUnit = 62
A(f"s_lshr_b32 {s(sUnit)}, {s(sWi)}, 1")
isln, ismod, req, proj, nolead, led = (A.newlabel(x) for x in ("isln", "ismod", "req", "proj", "nolead", "led"))
A(f"s_cmp_ge_u32 {s(sWi)}, 152")
A(f"s_cbranch_scc1 {ismod}")
A(f"s_cmp_ge_u32 {s(sWi)}, 24")
A(f"s_cbranch_scc1 {isln}")
R.common(A, ())
A(f"s_cmp_lg_u32 {s(sWi)}, 0")
A(f"s_cbranch_scc1 {nolead}")
A(f"s_cmp_lg_u32 {s(R.sWv)}, 0")
A(f"s_cbranch_scc1 {led}")
R.probe_role(A, True)
A.label(led)
A("s_barrier")
A.label(nolead)
R.get_epoch(A)
A(f"s_branch {req}")
A.label(isln)
A(f"s_sub_u32 {s(R.sRole)}, {s(sWi)}, 24")
R.ln1_fused(A, lambda A: R.qkv_request(A, sUnit), R.qkv_absorb)
flag(L.F_LN1, s(R.sRole))
R.signal(A, 1)
A(f"s_branch {proj}")
A.label(ismod)
A(f"s_sub_u32 {s(R.sRole)}, {s(sWi)}, 152")
R.mod_role(A)
R.get_epoch(A)
flag(L.F_MOD, s(R.sRole))
R.signal(A, 1)
stamp(1)
A.label(req)
R.qkv_request(A, sUnit)
R.qkv_absorb(A)
A.label(proj)
stamp(2)
A(f"s_mov_b32 {s(R.sRole)}, {s(sUnit)}")
A(f"s_and_b32 {s(R.sSeg)}, {s(sWi)}, 1")
A(f"s_mov_b32 {s(R.sStep)}, 2")
A(f"s_mov_b32 {s(R.sEnd)}, 64")
flag(L.F_QKV, s(sWi))

def qkv_wait(A):
    R.wait_many(A, L.F_LN1, 128, 1)
    stamp(3)

def qkv_done(A):
    skip = A.newlabel("nopub")
    A(f"s_cmp_lt_u32 {s(R.sSeg)}, 6")
    A(f"s_cbranch_scc1 {skip}")
    A(f"s_sub_u32 {s(R.sT1)}, {s(R.sSeg)}, {s(R.sStep)}")
    R.publish(A, s(R.sT1))
    A.label(skip)

R.qkv_role(A, qkv_wait, qkv_done, True)
R.signal(A, 255)
stamp(4)

PLAN = [(0, 30, "op", 0, 0, 2), (30, 2, "ln4", 0, 0, 1), (32, 10, "op", 30, 0, 2), (42, 20, "op", 0, 1, 2),
        (62, 2, "ln4", 2, 0, 1), (64, 20, "op", 20, 1, 2), (84, 10, "m1", 0, 0, 1), (94, 2, "ln4", 4, 0, 1),
        (96, 27, "m3", 0, 0, 1), (123, 5, None, 0, 0, 0), (128, 10, "m4", 0, 0, 2), (138, 10, "m4", 0, 1, 2),
        (148, 10, "m2", 0, 0, 1), (158, 2, "ln4", 6, 0, 1), (160, 8, "at", 0, 0, 2), (168, 8, "at", 0, 1, 2),
        (176, 8, "ln23", 0, 0, 2), (184, 8, "ln23", 0, 1, 2)]
lab = {k: A.newlabel(k) for k in ("op", "m1", "m2", "m3", "m4", "at", "ln23", "ln4")}
fin = A.newlabel("fin")
for w0, n, st, r0, seg0, step in PLAN:
    nxt = A.newlabel("plan")
    A(f"s_cmp_ge_u32 {s(sWi)}, {w0 + n}")
    A(f"s_cbranch_scc1 {nxt}")
    if st is None:
        A(f"s_branch {fin}")
    else:
        A(f"s_sub_u32 {s(R.sRole)}, {s(sWi)}, {w0 - r0}")
        A(f"s_mov_b32 {s(R.sSeg)}, {seg0}")
        A(f"s_mov_b32 {s(R.sStep)}, {step}")
        A(f"s_branch {lab[st]}")
    A.label(nxt)

def own_flag(base, per_set):
    A(f"s_mul_i32 {s(R.sT0)}, {s(R.sSeg)}, {per_set}")
    A(f"s_add_u32 {s(R.sT0)}, {s(R.sT0)}, {s(R.sRole)}")
    flag(base, s(R.sT0))

waiter = R.Dep

def sub_op(A, sFb, sT):
    A(f"s_lshl_b32 {s(sT)}, s57, 4")
    A(f"s_add_u32 {s(sFb)}, {s(sFb)}, {s(sT)}")

def sub_at(A, sFb, sT):
    A(f"s_lshl_b32 {s(sT)}, {s(R.sRole)}, 6")
    A(f"s_add_u32 {s(sFb)}, {s(sFb)}, {s(sT)}")

def late_mod():
    A(f"s_mov_b32 s63, {s(R.sRole)}")
    A(f"s_mul_i32 {s(R.sT0)}, {s(R.sSeg)}, 40")
    A(f"s_add_u32 {s(R.sRole)}, {s(R.sRole)}, {s(R.sT0)}")
    A(f"s_add_u32 {s(R.sRole)}, {s(R.sRole)}, 40")
    R.mod_role(A)
    flag(L.F_MOD, s(R.sRole))
    R.signal(A, 1)
    A(f"s_mov_b32 {s(R.sRole)}, s63")

def mod_wait(first, n):
    A(f"s_mov_b32 {s(R.sT2)}, {L.F_MOD + 8 * first}")
    R.wait_flags(A, R.sT2, n, 1)

def all_qkv():
    R.wait_many(A, L.F_QKV, 192, 255)

A.label(lab["op"]); late_mod(); own_flag(L.F_OP, 40)
R.gemm_role(A, "op", waiter(L.F_AT, 2, 8, 1, sub_op), R.signal_seg); A(f"s_branch {fin}")
A.label(lab["m1"]); own_flag(L.F_M1, 0)
R.gemm_role(A, "m1", waiter(L.F_LN23, 8, 8), R.signal_seg); A(f"s_branch {fin}")
A.label(lab["m2"]); own_flag(L.F_M2, 0)
R.gemm_role(A, "m2", waiter(L.F_M1, 10, 0, 2), R.signal_seg); A(f"s_branch {fin}")
A.label(lab["m3"]); own_flag(L.F_M3, 0)
R.gemm_role(A, "m3", waiter(L.F_LN4, 8), R.signal_seg); A(f"s_branch {fin}")
A.label(lab["m4"]); mod_wait(100, 20)
R.gemm_role(A, "m4", waiter(L.F_M3, 27), None); A(f"s_branch {fin}")
A.label(lab["at"]); own_flag(L.F_AT, 8); all_qkv()
R.attn_role(A, waiter(L.F_REC, 8, 0, 1, sub_at), R.signal_seg); A(f"s_branch {fin}")
A.label(lab["ln23"]); own_flag(L.F_LN23, 8); mod_wait(40, 60)
R.ln23_role(A, waiter(L.F_OP, 40, 40)); A(f"s_branch {fin}")
A.label(lab["ln4"]); own_flag(L.F_LN4, 0)
R.ln4_role(A, waiter(L.F_M2, 10))
A.label(fin)
if DIAG:
    stamp(5)
    widx()
    A(f"s_lshl_b32 {s(R.sT0)}, {s(sWi)}, 5")
    A(f"s_add_u32 {s(R.sT0)}, {s(R.sT0)}, {L.STAMP + 0x4000}")
    A(f"v_mov_b32 v246, {s(R.sSpin)}")
    A(f"s_lshl_b32 {s(R.sT1)}, {s(sWi)}, 8")
    A(f"s_add_u32 {s(R.sT1)}, {s(R.sT1)}, {L.STAMP + 0x8000}")
    A("v_and_b32 v238, 63, v0")
    A("v_lshlrev_b32 v238, 2, v238")
    A(f"buffer_store_dword v239, v238, {s(R.SW, 4)}, {s(R.sT1)} offen")
    A("s_mov_b64 exec, 1")
    A(f"buffer_store_dwordx4 v[240:243], off, {s(R.SW, 4)}, {s(R.sT0)}")
    A(f"buffer_store_dwordx4 v[244:247], off, {s(R.SW, 4)}, {s(R.sT0)} offset:16")
A.label(end)
A("s_endpgm")
head = [l for l in open("adaLN_cond__memory_aug_recurrent_mem_tr__mixer_s_mlp__prompt.s.ref").read().split("\n") if l.startswith(";") and "@launch" not in l and "Override" not in l and "grid=ceil" not in l]
txt, n = build_file(head, [(NAME, 256, 256, 163840)], [(NAME, A, 512, 256)])
if not opt.get("list", 0):
    txt = txt.replace(f"; @launch kernel={NAME} grid", "; @launch grid")
open(sys.argv[1], "w").write(txt)
print("nops", n, "bytes", len(txt))
```
